```python
import torch

def _softmax(x, axis=-1):
    return torch.softmax(x, dim=axis)
def _gelu(x):
    return torch.nn.functional.gelu(x, approximate="tanh")
def _silu(x):
    return torch.nn.functional.silu(x)
def _sigmoid(x):
    return torch.sigmoid(x)
def _layernorm(x, axis=-1, eps=1e-5):
    m = x.mean(dim=axis, keepdim=True)
    v = x.var(dim=axis, keepdim=True, unbiased=False)
    return (x - m) / torch.sqrt(v + eps)
def _scatter_add(tgt, idx, src, axis=0):
    return tgt.clone().index_add_(axis, idx, src)
def _segment_sum(src, seg, n):
    out = torch.zeros((n,) + src.shape[1:], dtype=src.dtype)
    return out.index_add_(0, seg, src)
def _pad(x, pw):
    flat = tuple(v for pair in reversed(pw) for v in pair)
    return torch.nn.functional.pad(x, flat)

kernel_name = 'sequential_preLN__mha_block__moe_arch_mod__prompt'

def setup_inputs():

    _w = (lambda a: (lambda t: t.to(torch.bfloat16) if t.is_floating_point() else t)(torch.as_tensor(a)))
    def _A_setup():
        B, S, D, H = 1, 2048, 640, 32
        return {
            "x": _w((lambda *s: torch.randn(*s, dtype=torch.bfloat16) * 0.05)(B, S, D)),
            "wqkv": _w((lambda *s: torch.randn(*s, dtype=torch.bfloat16) * 0.05)(D, 3 * D)),
            "wo": _w((lambda *s: torch.randn(*s, dtype=torch.bfloat16) * 0.05)(D, D)),
        }
    _A_in = _A_setup()

    def _B_setup():
        B, S, D, F, C = 1, 2048, 640, 1536, 2
        return {
            "x": _w((lambda *s: torch.randn(*s, dtype=torch.bfloat16) * 0.05)(B, S, D)),
            "w_r": _w((lambda *s: torch.randn(*s, dtype=torch.bfloat16) * 0.05)(D)),
            "w_gate": _w((lambda *s: torch.randn(*s, dtype=torch.bfloat16) * 0.05)(D, F)),
            "w_up": _w((lambda *s: torch.randn(*s, dtype=torch.bfloat16) * 0.05)(D, F)),
            "w_down": _w((lambda *s: torch.randn(*s, dtype=torch.bfloat16) * 0.05)(F, D)),
        }
    _B_in = _B_setup()

    return {
        "A_x": _A_in["x"],
        "A_wqkv": _A_in["wqkv"],
        "A_wo": _A_in["wo"],
        "B_x": _B_in["x"],
        "B_w_r": _B_in["w_r"],
        "B_w_gate": _B_in["w_gate"],
        "B_w_up": _B_in["w_up"],
        "B_w_down": _B_in["w_down"],
    }

def reference(A_x, A_wqkv, A_wo, B_x, B_w_r, B_w_gate, B_w_up, B_w_down):
    def _A_ref(x, wqkv, wo):
        B, S, D = x.shape
        H = 32
        Dh = D // H
        qkv = (lambda x, *d: x.permute(*d))((x @ wqkv).reshape(B, S, 3, H, Dh), 2, 0, 3, 1, 4)
        q, k, v = qkv[0], qkv[1], qkv[2]
        scores = torch.einsum("bhqd,bhkd->bhqk", q, k) * (Dh ** -0.5)
        p = _softmax(scores, axis=-1)
        o = torch.einsum("bhqk,bhkd->bhqd", p, v)
        return (lambda x, *d: x.permute(*d))(o, 0, 2, 1, 3).reshape(B, S, D) @ wo

    def _B_ref(x, w_r, w_gate, w_up, w_down):
        B, S, D = x.shape
        C = 2
        r = x @ w_r
        idx = torch.argsort(-r, axis=-1)[:, :C]
        idx_e = (lambda x, n, axis: torch.repeat_interleave(x, n, dim=axis))(idx.reshape(B, C, 1), D, axis=2)
        x_sel = (lambda x, i, axis: torch.take_along_dim(x, i, dim=axis))(x, idx_e, axis=1)
        g = _silu(x_sel @ w_gate)
        u = x_sel @ w_up
        y = (g * u) @ w_down
        r_sel = _sigmoid((lambda x, i, axis: torch.take_along_dim(x, i, dim=axis))(r, idx, axis=1))
        y = y * r_sel.reshape(B, C, 1)
        b_off = (torch.arange(B) * S).reshape(B, 1)
        flat_idx = (idx + b_off).reshape(B * C)
        zero = (x * 0.0).reshape(B * S, D)
        upd = _scatter_add(zero, flat_idx, y.reshape(B * C, D), axis=0)
        return x + upd.reshape(B, S, D)

    x = A_x
    h = x + _A_ref(_layernorm(x, axis=-1), A_wqkv, A_wo)
    h2 = h + _B_ref(_layernorm(h, axis=-1), B_w_r, B_w_gate, B_w_up, B_w_down)
    return h2
```

```python
import re

class Asm:
    def __init__(self):
        self.lines = []
        self._uid = 0
    def __call__(self, s):
        for ln in s.split("\n"):
            ln = ln.strip()
            if ln:
                self.lines.append(ln if ln.endswith(":") or ln.startswith(".") else "    " + ln)
    def label(self, name):
        self.lines.append(name + ":")
    def uid(self, p="L"):
        self._uid += 1
        return f"{p}_{self._uid}"
    def c(self, s):
        self.lines.append("    ; " + s)
    def text(self):
        return "\n".join(self.lines) + "\n"

def v(b, n=1):
    return f"v{b}" if n == 1 else f"v[{b}:{b+n-1}]"
def a(b, n=1):
    return f"a{b}" if n == 1 else f"a[{b}:{b+n-1}]"
def s(b, n=1):
    return f"s{b}" if n == 1 else f"s[{b}:{b+n-1}]"

class Alloc:
    def __init__(self, start, limit):
        self.p = start; self.limit = limit; self.hi = start
    def __call__(self, n=1, align=None):
        if align is None:
            align = 1 if n == 1 else 2
        self.p = (self.p + align - 1) // align * align
        b = self.p
        self.p += n
        assert self.p <= self.limit, f"register overflow {self.p} > {self.limit}"
        self.hi = max(self.hi, self.p)
        return b
    def mark(self): return self.p
    def release(self, m): self.p = m

REG = re.compile(r"^(-|\|)?(abs\()?([vas])(\d+|\[(\d+):(\d+)\])\)?\|?$")
def regs_of(op):
    op = op.strip()
    if op in ("vcc",): return {("s", "vcc")}
    if op in ("vcc_lo", "vcc_hi"): return {("s", "vcc")}
    if op in ("exec", "exec_lo", "exec_hi"): return {("s", "exec")}
    if op == "m0": return {("s", "m0")}
    m = REG.match(op)
    if not m: return set()
    k = m.group(3)
    if m.group(5) is not None:
        return {(k, i) for i in range(int(m.group(5)), int(m.group(6)) + 1)}
    return {(k, int(m.group(4)))}

TRANS = ("v_exp_f32", "v_log_f32", "v_rcp_f32", "v_rsq_f32", "v_sqrt_f32", "v_sin_f32", "v_cos_f32", "v_exp_f16", "v_rcp_iflag_f32")
def mfma_passes(mn):
    if "4x4x4" in mn: return 2
    if "_2b_" in mn: return 16
    if "_4b_" in mn: return 8
    if "32x32" in mn: return 8
    if "16x16" in mn: return 4
    raise ValueError(mn)

class Ins:
    def __init__(self, text, idx):
        self.text = text; self.idx = idx
        t = text.split(";")[0].strip()
        parts = t.split(None, 1)
        self.mn = mn = parts[0]
        rest = parts[1] if len(parts) > 1 else ""
        ops = [o.strip() for o in re.split(r",(?![^\[]*\])", rest)] if rest else []
        self.mods = ""
        if ops:
            last = ops[-1].split(None, 1)
            if len(last) > 1 and not mn.startswith("s_waitcnt"):
                ops[-1] = last[0]; self.mods = last[1]
        self.ops = ops
        self.dst = set(); self.src = set()
        self.kind = "other"; self.ws = 1
        self.A = self.B = self.C = set()
        R = [regs_of(o) for o in ops]
        if mn == "s_nop":
            self.kind = "nop"; self.ws = int(ops[0], 0) + 1
        elif mn.startswith("s_waitcnt"):
            self.kind = "wait"
            self.vm = self.lg = None
            m = re.search(r"vmcnt\((\d+)\)", rest); self.vm = int(m.group(1)) if m else None
            m = re.search(r"lgkmcnt\((\d+)\)", rest); self.lg = int(m.group(1)) if m else None
        elif mn.startswith("s_cbranch") or mn == "s_branch":
            self.kind = "branch"; self.target = ops[0]
            if "vcc" in mn: self.src = {("s", "vcc")}
            if "exec" in mn: self.src = {("s", "exec")}
        elif mn == "s_endpgm":
            self.kind = "end"
        elif mn.startswith("s_load") or mn.startswith("s_memtime") or mn.startswith("s_memrealtime") or mn.startswith("s_buffer_load"):
            self.kind = "smem"; self.dst = R[0]; self.src = set().union(*R[1:]) if len(R) > 1 else set()
        elif mn.startswith("s_"):
            self.kind = "salu"
            if mn.startswith("s_cmp") or mn.startswith("s_bitcmp") or mn in ("s_barrier", "s_setprio", "s_sleep", "s_setpc_b64"):
                self.src = set().union(*R) if R else set()
            else:
                self.dst = R[0]; self.src = set().union(*R[1:]) if len(R) > 1 else set()
                if "saveexec" in mn: self.dst = self.dst | {("s", "exec")}
                if mn in ("s_addk_i32", "s_mulk_i32"): self.src |= R[0]
        elif mn.startswith("v_mfma") or mn.startswith("v_smfmac"):
            self.kind = "mfma"; self.passes = mfma_passes(mn)
            self.dst = R[0]; self.A = R[1]; self.B = R[2]
            if mn.startswith("v_smfmac"):
                self.C = R[0]; self.A = R[1] | R[3]
            else:
                self.C = R[3]
            self.src = self.A | self.B | self.C
        elif mn.startswith("v_"):
            self.kind = "valu"
            base = re.sub(r"_(e32|e64|dpp|sdwa)$", "", mn)
            self.base = base
            self.trans = base in TRANS
            self.dl = base.startswith("v_dot")
            self.dpp = mn.endswith("_dpp") or "row_" in self.mods or "quad_perm" in self.mods
            if base == "v_nop":
                pass
            elif base.startswith("v_permlane"):
                self.dst = R[0] | R[1]; self.src = R[0] | R[1]
            elif "_co_" in base:
                self.dst = R[0] | R[1]; self.src = set().union(*R[2:])
            else:
                self.dst = R[0]; self.src = set().union(*R[1:]) if len(R) > 1 else set()
                if base in ("v_fmac_f32", "v_dot2c_f32_bf16", "v_writelane_b32") or self.dpp or "UNUSED_PRESERVE" in self.mods:
                    self.src |= R[0]
                if base.startswith("v_cmpx"): self.dst |= {("s", "exec")}
        elif mn.startswith("buffer_") or mn.startswith("global_"):
            self.kind = "vmem"
            self.lds = bool(re.search(r"\blds\b", self.mods)) or "_lds_" in mn
            self.store = "store" in mn
            self.atomic = "atomic" in mn
            self.data = set()
            if mn in ("buffer_wbl2", "buffer_inv"):
                pass
            elif self.lds:
                self.src = set().union(*R) | {("s", "m0")}
            elif mn.startswith("buffer_"):
                if self.store:
                    self.data = R[0]; self.src = set().union(*R)
                elif self.atomic:
                    self.data = R[0]; self.src = set().union(*R)
                    if "sc0" in self.mods: self.dst = R[0]
                else:
                    self.dst = R[0]; self.src = set().union(*R[1:])
                    if "d16" in mn: self.src |= R[0]
            else:
                if self.store:
                    self.data = R[1]; self.src = set().union(*R)
                else:
                    self.dst = R[0]; self.src = set().union(*R[1:])
            self.wide = self.store and (mn.endswith("x3") or mn.endswith("x4"))
        elif mn.startswith("ds_"):
            self.kind = "ds"
            if mn.startswith("ds_read") or "permute" in mn or "swizzle" in mn or "_rtn" in mn:
                self.dst = R[0]; self.src = set().union(*R[1:])
            else:
                self.src = set().union(*R)
        else:
            raise ValueError("unknown instruction: " + text)

def parse(lines):
    ins = []; labels = {}
    for ln in lines:
        t = ln.split(";")[0].strip()
        if not t or t.startswith("."): continue
        if t.endswith(":"):
            labels[t[:-1]] = len(ins); continue
        ins.append(Ins(t, len(ins)))
    return ins, labels

def vg(rs): return {r for r in rs if r[0] in "va"}
def sg(rs): return {r for r in rs if r[0] == "s"}
TA = {2: 5, 4: 8, 8: 12, 16: 20}
TC = {2: 4, 4: 6, 8: 10, 16: 18}
TW = {2: 1, 4: 3, 8: 7, 16: 15}

def need(p, c):
    n = 0; why = ""
    def up(k, w):
        nonlocal n, why
        if k > n: n = k; why = w
    if p.kind == "valu":
        d = vg(p.dst); ds = sg(p.dst)
        if c.kind == "mfma" and d & c.src: up(3 if p.dl else 2, "valu->mfma operand")
        if c.kind == "valu":
            if p.trans and not c.trans and d & c.src: up(1, "trans->valu")
            if p.dl and d & (c.src | c.dst):
                if c.base != p.base: up(3, "dot->other")
                else:
                    ab = set().union(*[regs_of(o) for o in c.ops[1:3]])
                    if d & ab: up(3, "dot->dot A/B")
            if c.base in ("v_readfirstlane_b32", "v_readlane_b32") and d & c.src: up(1, "valu->readlane")
            if c.dpp and d & c.src: up(2, "valu->dpp")
            if c.base.startswith("v_permlane") and d & c.src: up(2, "valu->permlane")
            if ("sdwa" in p.mn and "dst_sel:DWORD" not in p.mods) and d & (c.src | c.dst): up(1, "sdwa dst")
            if ds & c.src:
                up(4 if c.base in ("v_readlane_b32", "v_writelane_b32") else 2, "valu sgpr->valu")
        if c.kind in ("vmem", "ds") and p.dl and d & c.src: up(3, "dot->mem")
        if c.kind == "vmem" and ds & c.src: up(5, "valu sgpr->vmem")
        if ("s", "exec") in ds and c.kind in ("valu", "mfma"): up(5, "valu exec write")
    elif p.kind == "mfma":
        d = p.dst
        if c.kind == "mfma":
            if d & (c.A | c.B): up(TA[p.passes], "mfma D->mfma A/B")
            if d & c.C:
                if c.C == d and c.passes == p.passes: up(2 if p.passes == 2 else 0, "chain")
                else: up(TC[p.passes], "mfma D->mfma C overlap")
        elif c.kind == "valu":
            if d & (c.src | c.dst): up(TA[p.passes], "mfma D->valu")
            if vg(p.C) & c.dst: up(TW[p.passes], "mfma C WAR")
        elif c.kind in ("vmem", "ds"):
            if d & (c.src | c.dst): up(TA[p.passes], "mfma D->mem")
    elif p.kind == "vmem":
        if getattr(p, "wide", False) and p.data & c.dst:
            up(2 if c.kind in ("valu", "mfma") else 1, "wide store data WAR")
    elif p.kind == "salu":
        if ("s", "m0") in p.dst and c.kind == "vmem" and c.lds: up(1, "m0->lds dma")
    return n, why

def succ(ins, labels, i):
    x = ins[i]
    if x.kind == "end" or x.mn == "s_setpc_b64": return []
    if x.kind == "branch":
        t = labels[x.target]
        r = [t] if t < len(ins) else []
        if x.mn != "s_branch" and i + 1 < len(ins): r.append(i + 1)
        return r
    return [i + 1] if i + 1 < len(ins) else []

def lint_hazards(lines):
    ins, labels = parse(lines)
    errs = []
    for p in ins:
        if p.kind not in ("valu", "mfma", "vmem", "salu"): continue
        maxd = 20 if p.kind == "mfma" else 5
        stack = [(j, 0) for j in succ(ins, labels, p.idx)]
        seen = {}
        while stack:
            j, dist = stack.pop()
            if dist >= maxd or seen.get(j, 99) <= dist: continue
            seen[j] = dist
            c = ins[j]
            n, why = need(p, c)
            if n > dist:
                errs.append(f"HAZARD {why}: need {n} have {dist}\n    [{p.idx}] {p.text}\n    [{c.idx}] {c.text}")
            for k in succ(ins, labels, j):
                stack.append((k, dist + c.ws))
    return errs

def lint_waits(lines, entry=None, loops=2):
    ins, labels = parse(lines)
    errs = []
    i = labels[entry] if entry else 0
    vmq = []; lgq = []
    taken = {}
    steps = 0
    while i < len(ins) and steps < 2000000:
        steps += 1
        x = ins[i]
        if x.kind == "wait":
            if x.vm is not None:
                while len(vmq) > x.vm: vmq.pop(0)
            if x.lg is not None:
                if x.lg == 0: lgq.clear()
                elif not any(q.kind == "smem" for q in lgq):
                    while len(lgq) > x.lg: lgq.pop(0)
        else:
            touched = x.src | x.dst
            for q in vmq + lgq:
                if q.dst & touched and not (q.kind == x.kind and q.kind in ("vmem", "ds") and not (q.dst & x.src)):
                    errs.append(f"WAIT: [{x.idx}] {x.text}\n    touches pending result of [{q.idx}] {q.text}")
            if x.kind == "vmem":
                vmq.append(x)
                if len(vmq) > 63: errs.append(f"vmcnt overflow at [{x.idx}] {x.text}")
            if x.kind in ("ds", "smem"): lgq.append(x)
        if x.kind == "end" or x.mn == "s_setpc_b64": break
        if x.kind == "branch":
            t = labels[x.target]
            if x.mn == "s_branch" and t > i: i = t; continue
            if t <= i:
                taken[i] = taken.get(i, 0) + 1
                if taken[i] <= loops: i = t; continue
                if x.mn == "s_branch": break
        i += 1
    return sorted(set(errs))
```

```python
from asmlib import *
import struct, math
NAME = "sequential_preLN__mha_block__moe_arch_mod__prompt"
KA_X, KA_WQKV, KA_WO, KA_BX, KA_WR, KA_WG, KA_WU, KA_WD, KA_OUT, KA_DBG, KA_WS = [8*i for i in range(11)]
WS_QK = 0
WS_V  = 0x500000
WS_OM = 0x780000
WS_OT = 0x980000
WS_H  = 0xA00000
WS_MISC = 0xC80000
WS_SIZE = 0x1000000
QSCALE = math.log2(math.e) / math.sqrt(20.0)
def f32(x):
    return "0x%08x" % struct.unpack("<I", struct.pack("<f", x))[0]

def srd(A, b, nbytes):
    A(f"s_mov_b32 s{b+2}, {nbytes}\ns_mov_b32 s{b+3}, 0x20000")

def kernel_header(A, label):
    A(f".globl {label}\n.p2align 8\n.type {label},@function")
    A.label(label)

def descriptor(label, vgpr, acc, sgpr=102):
    return f""".amdhsa_kernel {label}
  .amdhsa_next_free_vgpr {vgpr}
  .amdhsa_next_free_sgpr {sgpr}
  .amdhsa_accum_offset {acc}
  .amdhsa_group_segment_fixed_size 0
  .amdhsa_kernarg_size 88
  .amdhsa_user_sgpr_count 2
  .amdhsa_user_sgpr_kernarg_segment_ptr 1
  .amdhsa_system_sgpr_workgroup_id_x 1
.end_amdhsa_kernel
"""

def swap23(A, dst, src, t0, t1):
    A(f"""v_lshrrev_b32 v{t0}, 1, v{src}
          v_xor_b32 v{t0}, v{t0}, v{src}
          v_and_b32 v{t0}, 4, v{t0}
          v_mul_u32_u24 v{t1}, 3, v{t0}
          v_xor_b32 v{dst}, v{t1}, v{src}""")

WS_L2  = 0xD00000
WS_KEY = 0xC80000
WS_ACT = 0xC90000

def allreduce16(A, op, regs):
    for ror in (8, 4, 2, 1):
        if len(regs) < 3: A(f"s_nop {2-len(regs)}")
        for r in regs:
            A(f"{op}_dpp v{r}, v{r}, v{r} row_ror:{ror} row_mask:0xf bank_mask:0xf")

def allreduce_x(A, op, regs, tmps, which):
    for r, t in zip(regs, tmps):
        A(f"v_mov_b32 v{t}, v{r}")
    A("s_nop 1")
    for r, t in zip(regs, tmps):
        A(f"v_permlane{which}_swap_b32 v{r}, v{t}")
    for r, t in zip(regs, tmps):
        A(f"{op} v{r}, v{r}, v{t}")

def unpack(A, dlo, dhi, src):
    A(f"v_lshlrev_b32 v{dlo}, 16, v{src}\nv_and_b32 v{dhi}, 0xffff0000, v{src}")
```

```python
from common import *

NSLOT = 4
A_LDS = NSLOT * 32768 + 2048
STAT = NSLOT * 32768

def kernel_A(A, label):
    kernel_header(A, label)
    sX, sW, sWS = 4, 8, 12
    sw, srb, scb, stw, scw = 16, 17, 18, 19, 20
    sMX, sMW, sOX, sOW, sIT, sSL, sT0, sT1, sONE, sSC = 21, 22, 23, 24, 25, 26, 27, 28, 29, 30
    V = Alloc(1, 256)
    lane = V(); t0 = V(); t1 = V(); t2 = V(); t3 = V(); rho = V(); prm = V(); hb = V()
    vXD = V(4); vWD = V(4)
    bX = V(); bW = V()
    aX = V(8); aW = V(2)
    sx = V(); sq = V(); swv = V()
    F = [V(16, 4), V(16, 4)]
    acc = [[V(16, 4) for C in range(2)] for T in range(2)]
    ep = V(64, 4)
    pr = V(4, 2)
    done = label + "_done"
    A(f"""s_load_dwordx2 s[{sX}:{sX+1}], s[0:1], {KA_X}
          s_load_dwordx2 s[{sW}:{sW+1}], s[0:1], {KA_WQKV}
          s_load_dwordx2 s[{sWS}:{sWS+1}], s[0:1], {KA_WS}
          s_cmp_ge_u32 s2, 256
          s_cbranch_scc1 {done}
          s_lshr_b32 s{sT0}, s2, 3
          s_and_b32 s{srb}, s2, 3
          s_lshl_b32 s{srb}, s{srb}, 2
          s_and_b32 s{sT1}, s{sT0}, 3
          s_add_u32 s{srb}, s{srb}, s{sT1}
          s_and_b32 s{scb}, s2, 4
          s_lshl_b32 s{scb}, s{scb}, 1
          s_lshr_b32 s{sT1}, s{sT0}, 2
          s_add_u32 s{scb}, s{scb}, s{sT1}
          s_cmp_ge_u32 s{scb}, 15
          s_cbranch_scc1 {done}
          v_lshrrev_b32 v{t0}, 6, v0
          v_and_b32 v{lane}, 63, v0
          v_readfirstlane_b32 s{sw}, v{t0}""")
    srd(A, sX, 2621440); srd(A, sW, 2457600); srd(A, sWS, WS_SIZE)
    A(f"""s_and_b32 s{stw}, s{sw}, 1
          s_lshr_b32 s{scw}, s{sw}, 1
          s_lshl_b32 s{sT0}, s{srb}, 7
          s_lshl_b32 s{sT1}, s{sw}, 5
          s_add_u32 s{sT0}, s{sT0}, s{sT1}
          s_mul_i32 s{sT0}, s{sT0}, 1280""")
    A(f"""v_lshrrev_b32 v{t0}, 3, v{lane}
          v_mul_u32_u24 v{t0}, 1280, v{t0}
          v_add_u32 v{t0}, s{sT0}, v{t0}
          v_lshrrev_b32 v{t1}, 4, v{lane}
          v_and_b32 v{t2}, 7, v{lane}
          v_xor_b32 v{t2}, v{t2}, v{t1}
          v_lshlrev_b32 v{t2}, 4, v{t2}
          v_add_u32 v{vXD}, v{t0}, v{t2}
          v_xor_b32 v{t2}, 64, v{t2}
          v_add_u32 v{vXD+1}, v{t0}, v{t2}
          v_add_u32 v{vXD+1}, {10240-1024}, v{vXD+1}
          v_add_u32 v{vXD+2}, {2*(10240-1024)}, v{vXD}
          v_add_u32 v{vXD+3}, {2*(10240-1024)}, v{vXD+1}""")
    A(f"""s_mul_i32 s{sT0}, s{sw}, {16*3840}
          s_lshl_b32 s{sT1}, s{scb}, 8
          s_add_u32 s{sT0}, s{sT0}, s{sT1}
          v_mul_u32_u24 v{t0}, 3840, v{t1}
          v_add_u32 v{t0}, s{sT0}, v{t0}
          v_bfe_u32 v{t2}, v{lane}, 2, 2
          v_xor_b32 v{t2}, v{t2}, v{t1}
          v_lshlrev_b32 v{t2}, 6, v{t2}
          v_and_b32 v{t3}, 3, v{lane}
          v_lshl_add_u32 v{t2}, v{t3}, 4, v{t2}
          v_add_u32 v{vWD}, v{t0}, v{t2}
          v_add_u32 v{vWD+1}, {4*3840-1024}, v{vWD}
          v_add_u32 v{vWD+2}, {2*(4*3840-1024)}, v{vWD}
          v_add_u32 v{vWD+3}, {3*(4*3840-1024)}, v{vWD}
          s_lshl_b32 s{sMX}, s{sw}, 12
          s_add_u32 s{sMW}, s{sMX}, 16384
          s_mov_b32 s{sOX}, 0
          s_mov_b32 s{sOW}, 0
          s_mov_b32 s{sSL}, 0
          s_waitcnt lgkmcnt(0)""")
    def dma_list():
        L = [f"s_add_u32 m0, s{sMX}, s{sSL}", None]
        L += [f"buffer_load_dwordx4 v{vXD+i}, s[{sX}:{sX+3}], s{sOX} offen offset:{1024*i} lds" for i in range(4)]
        L += [f"s_add_u32 m0, s{sMW}, s{sSL}", f"s_add_u32 s{sOX}, s{sOX}, 128"]
        L += [f"buffer_load_dwordx4 v{vWD+i}, s[{sW}:{sW+3}], s{sOW} offen offset:{1024*i} lds" for i in range(4)]
        L += [f"s_add_u32 s{sOW}, s{sOW}, {64*3840}"]
        return L
    for st in range(NSLOT):
        for x in dma_list():
            A(x if x else "s_nop 0")
        A(f"s_add_u32 s{sSL}, s{sSL}, 32768")
    A(f"""s_mov_b32 s{sSL}, 0
          s_mov_b32 s{sIT}, 0
          s_mov_b32 s{sONE}, 0x3f803f80
          s_mov_b32 s{sSC}, 1.0
          s_cmp_lt_u32 s{scb}, 5
          s_cselect_b32 s{sSC}, {f32(QSCALE)}, s{sSC}
          v_and_b32 v{rho}, 31, v{lane}
          v_lshrrev_b32 v{hb}, 5, v{lane}""")
    swap23(A, prm, rho, t0, t1)
    for T in range(2):
        for C in range(2):
            for r in range(16):
                A(f"v_mov_b32 v{acc[T][C]+r}, 0")
    A(f"v_mov_b32 v{sx}, 0\nv_mov_b32 v{sq}, 0\nv_mov_b32 v{swv}, 0")
    A(f"s_cmp_ge_u32 s{scb}, 10\ns_cbranch_scc1 {label}_V")

    def variant(isV):
        xr = prm if isV else rho
        A(f"""s_lshl_b32 s{sT0}, s{stw}, 13
              s_lshl_b32 s{sT1}, s{scw}, 12
              s_add_u32 s{sT0}, s{sT0}, s{sT1}
              v_bfe_u32 v{t0}, v{xr}, 1, 3
              v_xor_b32 v{t0}, v{t0}, v{hb}
              v_lshlrev_b32 v{t0}, 4, v{t0}
              v_lshl_add_u32 v{t0}, v{xr}, 7, v{t0}
              v_add_u32 v{bX}, s{sT0}, v{t0}""")
        A(f"""s_lshl_b32 s{sT0}, s{scw}, 1
              s_add_u32 s{sT0}, s{sT0}, s{stw}
              v_bfe_u32 v{t0}, v{lane}, 2, 2
              v_xor_b32 v{t1}, s{sT0}, v{t0}
              v_lshlrev_b32 v{t1}, 6, v{t1}
              v_lshl_add_u32 v{t0}, v{hb}, 3, v{t0}
              v_lshl_add_u32 v{t1}, v{t0}, 8, v{t1}
              v_bfe_u32 v{t0}, v{lane}, 4, 1
              v_lshl_add_u32 v{t1}, v{t0}, 5, v{t1}
              v_and_b32 v{t0}, 3, v{lane}""")
        if not isV:
            A(f"""v_lshrrev_b32 v{t2}, 1, v{t0}
                  v_and_b32 v{t0}, 1, v{t0}
                  v_lshl_add_u32 v{t0}, v{t0}, 1, v{t2}""")
        A(f"""v_lshl_add_u32 v{t1}, v{t0}, 3, v{t1}
              v_add_u32 v{bW}, 16384, v{t1}""")
        def addr_update(sreg):
            L = [f"v_add_u32 v{aX}, s{sreg}, v{bX}", f"v_add_u32 v{aW}, s{sreg}, v{bW}"]
            for T in range(2):
                for ks in range(4):
                    if T or ks:
                        L.append(f"v_xor_b32 v{aX+4*T+ks}, {4096*T + 32*ks}, v{aX}")
            L.append(f"v_xor_b32 v{aW+1}, 64, v{aW}")
            return L
        def reads(ks, f):
            L = []
            for i in range(2):
                L.append(f"ds_read_b128 {v(f+4*i,4)}, v{aX+4*i+ks}")
                L.append(f"ds_read_b64_tr_b16 {v(f+8+4*i,2)}, v{aW+i} offset:{(16*ks)*256}")
                L.append(f"ds_read_b64_tr_b16 {v(f+10+4*i,2)}, v{aW+i} offset:{(16*ks+4)*256}")
            return L
        def mfma(T, C, f):
            x_, w_ = v(f+4*T, 4), v(f+8+4*C, 4)
            p, q = (x_, w_) if isV else (w_, x_)
            return f"v_mfma_f32_32x32x16_bf16 {v(acc[T][C],16)}, {p}, {q}, {v(acc[T][C],16)}"
        for x in addr_update(sSL): A(x)
        A(f"s_waitcnt vmcnt({8*(NSLOT-1)})\ns_barrier")
        for x in reads(0, F[0]): A(x)
        loop = f"{label}_loop{int(isV)}"
        A(".p2align 3")
        A.label(loop)
        for ks in range(4):
            f = F[ks & 1]; fn = F[(ks+1) & 1]
            M = [mfma(0,0,f), mfma(1,0,f), mfma(0,1,f), mfma(1,1,f)]
            fill = [[], [], [], []]
            if ks < 3:
                A("s_waitcnt lgkmcnt(0)")
                R = reads(ks+1, fn)
                fill[0] = R[:3]; fill[1] = R[3:]
                if ks == 2:
                    pre = [f"s_add_u32 s{sT0}, s{sSL}, 32768", f"s_cmp_eq_u32 s{sT0}, {NSLOT*32768}", f"s_cselect_b32 s{sT0}, 0, s{sT0}"]
                    U = addr_update(sT0)
                    fill[1] += pre; fill[2] = U[:5]; fill[3] = U[5:]
                if ks == 1:
                    fill[2] = [f"s_cmp_ge_u32 s{sIT}, {10-NSLOT}", f"s_cselect_b32 s{sX+2}, 0, s{sX+2}", f"s_cselect_b32 s{sW+2}, 0, s{sW+2}"]
            else:
                A(f"s_waitcnt vmcnt({8*(NSLOT-2)}) lgkmcnt(0)\ns_barrier")
                R = reads(0, fn)
                D = dma_list()
                fill[0] = R[:3] + [D[0]]; fill[1] = R[3:] + D[2:4]; fill[2] = D[4:10]; fill[3] = D[10:]
                fill[3] += [f"s_mov_b32 s{sSL}, s{sT0}", f"s_add_u32 s{sIT}, s{sIT}, 1", f"s_cmp_lt_u32 s{sIT}, 10"]
            for i in range(4):
                A(M[i])
                for x in fill[i]: A(x)
            for r in range(4):
                A(f"v_dot2_f32_bf16 v{sx}, v{f+r}, s{sONE}, v{sx}")
                A(f"v_dot2_f32_bf16 v{sq}, v{f+r}, v{f+r}, v{sq}")
                A(f"v_dot2_f32_bf16 v{swv}, v{f+8+r}, s{sONE}, v{swv}")
        A(f"s_cbranch_scc1 {loop}")
        A("s_nop 2")
        for r in (sx, sq, swv):
            A(f"v_mov_b32 v{t0}, v{r}\ns_nop 1\nv_permlane32_swap_b32 v{r}, v{t0}\nv_add_f32 v{r}, v{r}, v{t0}")
        wr = rho if isV else prm
        A(f"""v_mul_f32 v{sx}, {f32(1/640)}, v{sx}
              v_mul_f32 v{t0}, v{sx}, v{sx}
              v_mov_b32 v{t1}, {f32(1/640)}
              v_fma_f32 v{t0}, v{sq}, v{t1}, -v{t0}
              v_max_f32 v{t0}, 0, v{t0}
              v_add_f32 v{t0}, {f32(1e-5)}, v{t0}
              v_rsq_f32 v{t0}, v{t0}
              s_lshl_b32 s{sT0}, s{stw}, 8
              s_lshl_b32 s{sT1}, s{scw}, 7
              s_add_u32 s{sT0}, s{sT0}, s{sT1}
              s_add_u32 s{sT0}, s{sT0}, {STAT}
              v_mul_f32 v{t0}, s{sSC}, v{t0}
              v_mul_f32 v{t1}, v{sx}, v{t0}
              v_lshl_add_u32 v{t2}, v{xr}, 2, s{sT0}
              ds_write_b32 v{t2}, v{t0}
              ds_write_b32 v{t2}, v{t1} offset:512
              s_lshl_b32 s{sOX}, s{scw}, 8
              s_lshl_b32 s{sT1}, s{stw}, 7
              s_add_u32 s{sOX}, s{sOX}, s{sT1}
              s_add_u32 s{sOX}, s{sOX}, {STAT+1024}
              v_lshl_add_u32 v{t3}, v{wr}, 2, s{sOX}
              ds_write_b32 v{t3}, v{swv}
              s_waitcnt lgkmcnt(0)
              s_barrier""")
        if not isV:
            A(f"""v_lshl_add_u32 v{t0}, v{rho}, 2, s{sT0}
                  v_xor_b32 v{t1}, 128, v{t0}
                  ds_read_b32 v{pr}, v{t0}
                  ds_read_b32 v{pr+1}, v{t0} offset:512
                  ds_read_b32 v{pr+2}, v{t1}
                  ds_read_b32 v{pr+3}, v{t1} offset:512
                  v_lshl_add_u32 v{t0}, v{hb}, 5, s{sOX}
                  v_xor_b32 v{t1}, 128, v{t0}""")
            for C in range(2):
                for q in range(4):
                    A(f"ds_read_b128 {v(ep+16*C+4*q,4)}, v{t0 if C == 0 else t1} offset:{(q>>1)*64 + (q&1)*16}")
            A(f"""s_lshl_b32 s{sT0}, s{scb}, 4
                  s_lshl_b32 s{sT1}, s{scw}, 3
                  s_add_u32 s{sT0}, s{sT0}, s{sT1}
                  s_lshl_b32 s{sT1}, s{stw}, 2
                  s_add_u32 s{sT0}, s{sT0}, s{sT1}
                  s_lshl_b32 s{sT0}, s{sT0}, 15
                  s_lshl_b32 s{sT1}, s{srb}, 11
                  s_add_u32 s{sT0}, s{sT0}, s{sT1}
                  s_lshl_b32 s{sT1}, s{stw}, 10
                  s_add_u32 s{sT0}, s{sT0}, s{sT1}
                  s_lshl_b32 s{sT1}, s{scw}, 9
                  s_add_u32 s{sT0}, s{sT0}, s{sT1}
                  v_lshlrev_b32 v{t0}, 15, v{hb}
                  v_lshl_add_u32 v{t0}, v{rho}, 4, v{t0}
                  v_add_u32 v{aX}, s{sT0}, v{t0}
                  v_xor_b32 v{aX+1}, {4<<15}, v{aX}
                  v_xor_b32 v{aX+2}, 512, v{aX}
                  v_xor_b32 v{aX+3}, 512, v{aX+1}
                  s_mov_b32 s{sT0}, {2<<15}
                  s_waitcnt lgkmcnt(0)""")
            for T in range(2):
                for C in range(2):
                    b = acc[T][C]; p = v(pr+2*T, 2)
                    for r in range(0, 16, 2):
                        A(f"v_pk_mul_f32 {v(b+r,2)}, {v(b+r,2)}, {p} op_sel_hi:[1,0]")
                        A(f"v_pk_fma_f32 {v(b+r,2)}, {v(ep+16*C+r,2)}, {p}, {v(b+r,2)} op_sel:[0,1,0] neg_lo:[0,1,0] neg_hi:[0,1,0]")
                    for r in range(8):
                        A(f"v_cvt_pk_bf16_f32 v{b+r}, v{b+2*r}, v{b+2*r+1}")
                    A(f"buffer_store_dwordx4 {v(b,4)}, v{aX+2*T+C}, s[{sWS}:{sWS+3}], 0 offen")
                    A(f"buffer_store_dwordx4 {v(b+4,4)}, v{aX+2*T+C}, s[{sWS}:{sWS+3}], s{sT0} offen")
        else:
            A(f"""v_lshl_add_u32 v{t0}, v{rho}, 2, s{sOX}
                  v_xor_b32 v{t1}, 128, v{t0}
                  ds_read_b32 v{pr}, v{t0}
                  ds_read_b32 v{pr+2}, v{t1}
                  v_lshl_add_u32 v{t0}, v{hb}, 5, s{sT0}
                  v_xor_b32 v{t1}, 128, v{t0}""")
            for T in range(2):
                for q in range(4):
                    A(f"ds_read_b128 {v(ep+32*T+4*q,4)}, v{t0 if T == 0 else t1} offset:{(q>>1)*64 + (q&1)*16}")
                    A(f"ds_read_b128 {v(ep+32*T+16+4*q,4)}, v{t0 if T == 0 else t1} offset:{512 + (q>>1)*64 + (q&1)*16}")
            A(f"""s_sub_u32 s{sT0}, s{scb}, 10
                  s_lshl_b32 s{sT0}, s{sT0}, 7
                  s_lshl_b32 s{sT1}, s{scw}, 6
                  s_add_u32 s{sT0}, s{sT0}, s{sT1}
                  s_lshl_b32 s{sT1}, s{stw}, 5
                  s_add_u32 s{sT0}, s{sT0}, s{sT1}
                  v_add_u32 v{t0}, s{sT0}, v{rho}
                  v_xor_b32 v{t1}, 32, v{t0}
                  s_mov_b32 s{sT1}, {81920 - 320}""")
            for C, tt in ((0, t0), (1, t1)):
                A(f"""v_mul_u32_u24 v{t2}, 3277, v{tt}
                      v_lshrrev_b32 v{t2}, 16, v{t2}
                      v_mul_u32_u24 v{t2}, s{sT1}, v{t2}
                      v_lshl_add_u32 v{aX+C}, v{tt}, 4, v{t2}""")
            A(f"""s_lshl_b32 s{sT0}, s{srb}, 4
                  s_lshl_b32 s{sT1}, s{stw}, 3
                  s_add_u32 s{sT0}, s{sT0}, s{sT1}
                  s_lshl_b32 s{sT1}, s{scw}, 2
                  s_add_u32 s{sT0}, s{sT0}, s{sT1}
                  s_xor_b32 s{sT1}, s{sT0}, 4
                  s_mul_i32 s{sT0}, s{sT0}, 320
                  s_mul_i32 s{sT1}, s{sT1}, 320
                  s_add_u32 s{sT0}, s{sT0}, {WS_V}
                  s_add_u32 s{sT1}, s{sT1}, {WS_V}
                  v_mul_u32_u24 v{t2}, 320, v{hb}
                  v_add_u32 v{aX}, v{aX}, v{t2}
                  v_add_u32 v{aX+1}, v{aX+1}, v{t2}
                  s_waitcnt lgkmcnt(0)""")
            for T in range(2):
                for C in range(2):
                    b = acc[T][C]; p = v(pr+2*C, 2)
                    for r in range(0, 16, 2):
                        A(f"v_pk_mul_f32 {v(b+r,2)}, {v(b+r,2)}, {v(ep+32*T+r,2)}")
                        A(f"v_pk_fma_f32 {v(b+r,2)}, {v(ep+32*T+16+r,2)}, {p}, {v(b+r,2)} op_sel_hi:[1,0,1] neg_lo:[0,1,0] neg_hi:[0,1,0]")
                    for r in range(8):
                        A(f"v_cvt_pk_bf16_f32 v{b+r}, v{b+2*r}, v{b+2*r+1}")
                    so = sT0 if T == 0 else sT1
                    A(f"buffer_store_dwordx4 {v(b,4)}, v{aX+C}, s[{sWS}:{sWS+3}], s{so} offen")
                    A(f"buffer_store_dwordx4 {v(b+4,4)}, v{aX+C}, s[{sWS}:{sWS+3}], s{so} offen offset:640")
        A("s_endpgm")
    variant(False)
    A.label(label + "_V")
    variant(True)
    A.label(done)
    A("s_endpgm")
    return dict(label=label, grid=256, block=256, lds=A_LDS, vgpr=V.hi, acc=(V.hi+3)//4*4, lint_entries=[None, label+"_V"])
```

```python
from common import *
B_LDS = 4 * 6144

def kernel_B(A, label):
    kernel_header(A, label)
    sWS = 4
    sw, sh, sqb, sqh, skh, sT0, sT1, sT2, sKO, sVO, sPA, sTP = 8, 9, 10, 11, 12, 13, 14, 15, 16, 17, 18, 19
    sVM = 20
    sE = 22
    V = Alloc(1, 256)
    lane = V(); rho = V(); hb = V(); t0 = V(); t1 = V(); t2 = V(); idx = V()
    aKm = V(); aKt = V(); aV = V(2); aQm = V(); aQt = V()
    Qm = [V(4, 4) for t in range(4)]
    Qt = [[V(2) for t in range(4)] for z in range(2)]
    S = [V(16, 4) for t in range(4)]
    Km = [[V(4, 4) for kb in range(2)] for st in range(2)]
    Vv = [[[V(4, 4) for f in range(2)] for kb in range(2)] for st in range(2)]
    Kt = [V(2) for st in range(2)]
    O = [V(16, 4) for t in range(4)]
    done = label + "_done"
    W = f"s[{sWS}:{sWS+3}]"
    A(f"""s_load_dwordx2 s[{sWS}:{sWS+1}], s[0:1], {KA_WS}
          s_cmp_ge_u32 s2, 256
          s_cbranch_scc1 {done}
          v_lshrrev_b32 v{t0}, 6, v0
          v_and_b32 v{lane}, 63, v0
          v_readfirstlane_b32 s{sw}, v{t0}
          s_and_b32 s{sT0}, s2, 7
          s_lshl_b32 s{sh}, s{sT0}, 2
          s_lshr_b32 s{sT0}, s2, 6
          s_add_u32 s{sh}, s{sh}, s{sT0}
          s_bfe_u32 s{sqb}, s2, 0x30003
          s_and_b32 s{sqh}, s{sw}, 1
          s_lshr_b32 s{skh}, s{sw}, 1
          s_mul_i32 s{sPA}, s{sh}, 5
          s_add_u32 s{sPA}, s{sPA}, 1
          s_lshr_b32 s{sPA}, s{sPA}, 1
          s_lshl_b32 s{sPA}, s{sPA}, 15
          s_add_u32 s{sT0}, s{sPA}, {2<<15}
          s_sub_u32 s{sT1}, s{sPA}, {(1<<15) - 8}
          s_bitcmp1_b32 s{sh}, 0
          s_cselect_b32 s{sTP}, s{sT1}, s{sT0}
          v_and_b32 v{rho}, 31, v{lane}
          v_lshrrev_b32 v{hb}, 5, v{lane}""")
    srd(A, sWS, WS_SIZE)
    A(f"""s_lshl_b32 s{sT0}, s{sqb}, 12
          s_lshl_b32 s{sT1}, s{sqh}, 11
          s_add_u32 s{sT0}, s{sT0}, s{sT1}
          s_xor_b32 s{sT1}, s{skh}, 1
          s_lshl_b32 s{sT1}, s{sT1}, 10
          s_add_u32 s{sT2}, s{sT0}, s{sT1}
          s_xor_b32 s{sT1}, s{sT2}, 1024
          v_lshlrev_b32 v{t0}, 15, v{hb}
          v_lshl_add_u32 v{t0}, v{rho}, 4, v{t0}
          v_add_u32 v{aQm}, s{sPA}, v{t0}
          v_lshlrev_b32 v{t1}, 4, v{rho}
          v_add_u32 v{aQt}, s{sTP}, v{t1}
          s_lshl_b32 s{sT0}, s{skh}, 14
          s_add_u32 s{sT0}, s{sT0}, {80<<15}
          v_add_u32 v{aKm}, s{sT0}, v{aQm}
          s_add_u32 s{sT0}, s{sT0}, s{sTP}
          v_lshlrev_b32 v{t1}, 4, v{lane}
          v_add_u32 v{aKt}, s{sT0}, v{t1}""")
    A(f"""s_mul_i32 s{sT0}, s{sh}, 81920
          s_mul_i32 s{sKO}, s{skh}, {128*320}
          s_add_u32 s{sT0}, s{sT0}, s{sKO}
          s_add_u32 s{sT0}, s{sT0}, {WS_V}
          v_and_b32 v{t0}, 28, v{rho}
          v_mov_b32 v{t1}, 0x42130
          v_lshrrev_b32 v{t0}, v{t0}, v{t1}
          v_and_b32 v{t0}, 7, v{t0}
          v_and_b32 v{t1}, 3, v{rho}
          v_lshl_add_u32 v{t0}, v{t0}, 2, v{t1}
          v_lshlrev_b32 v{t0}, 4, v{t0}
          v_mul_u32_u24 v{t1}, 320, v{hb}
          v_add3_u32 v{aV}, v{t0}, v{t1}, s{sT0}
          v_add_u32 v{aV+1}, 2560, v{aV}
          s_mov_b32 s{sVM}, 0xfffff
          s_mov_b32 s{sVM+1}, 0xfffff
          s_mov_b32 s{sKO}, 0
          s_mov_b32 s{sVO}, 0
          v_mov_b32 v{idx}, 0xdddddddd
          v_cmp_eq_u32 vcc, 20, v{rho}
          v_mov_b32 v{t1}, 0x3f803f80
          v_mov_b32 v{t0}, 0""")
    A(f"v_cndmask_b32 v{t0}, v{t0}, v{t1}, vcc")
    for st in range(2):
        for kb in range(2):
            for f in range(2):
                for r in range(4):
                    A(f"v_mov_b32 v{Vv[st][kb][f]+r}, v{t0}")
    for z in range(2):
        for t in range(4):
            A(f"v_mov_b32 v{Qt[z][t]}, 0\nv_mov_b32 v{Qt[z][t]+1}, 0")
    A("s_waitcnt lgkmcnt(0)")
    def kv_loads(st, second):
        ko = 1024 if second else 0
        L = [f"buffer_load_dwordx4 {v(Km[st][0],4)}, v{aKm}, {W}, s{sKO} offen offset:{ko}",
             f"buffer_load_dwordx2 {v(Kt[st],2)}, v{aKt}, {W}, s{sKO} offen offset:{ko}",
             f"buffer_load_dwordx4 {v(Km[st][1],4)}, v{aKm}, {W}, s{sKO} offen offset:{ko+512}",
             f"s_mov_b64 exec, s[{sVM}:{sVM+1}]"]
        for kb in range(2):
            for f in range(2):
                L.append(f"buffer_load_dwordx4 {v(Vv[st][kb][f],4)}, v{aV+(1 if second else 0)}, {W}, s{sVO} offen offset:{(4*kb+2*f)*320}")
        L.append("s_mov_b64 exec, -1")
        return L
    for t in range(4):
        so = sT2 if t < 2 else sT1
        A(f"buffer_load_dwordx4 {v(Qm[t],4)}, v{aQm}, {W}, s{so} offen offset:{512*(t&1)}")
    for z in range(2):
        A(f"s_mov_b32 exec_lo, {-1 if z == 0 else 0}\ns_mov_b32 exec_hi, {0 if z == 0 else -1}")
        for t in range(4):
            so = sT2 if t < 2 else sT1
            A(f"buffer_load_dwordx2 {v(Qt[z][t],2)}, v{aQt}, {W}, s{so} offen offset:{512*(t&1)}")
    A("s_mov_b64 exec, -1")
    for x in kv_loads(0, False): A(x)
    for t in range(4):
        for r in range(16):
            A(f"v_mov_b32 v{O[t]+r}, 0")
    for r in range(16):
        A(f"v_mov_b32 v{S[3]+r}, 0")
    def qk(st, kb, t):
        return (f"v_mfma_f32_32x32x16_bf16 {v(S[t],16)}, {v(Km[st][kb],4)}, {v(Qm[t],4)}, 0",
                f"v_mfma_f32_32x32x8_bf16 {v(S[t],16)}, {v(Kt[st],2)}, {v(Qt[kb][t],2)}, {v(S[t],16)}")
    def pv(st, kb, t):
        return tuple(f"v_smfmac_f32_32x32x32_bf16 {v(O[t],16)}, {v(Vv[st][kb][f],4)}, {v(S[t]+8*f,8)}, v{idx}" for f in range(2))
    A("s_waitcnt vmcnt(0)")
    q = qk(0, 0, 0)
    A(q[0]); A(q[1]); A("s_nop 10")
    loop = label + "_loop"
    A(".p2align 3")
    A.label(loop)
    for n in range(16):
        st, kb, t = n >> 3, (n >> 2) & 1, n & 3
        nn = (n + 1) & 15; pn = (n - 1) & 15
        q = qk(nn >> 3, (nn >> 2) & 1, nn & 3)
        p = pv(pn >> 3, (pn >> 2) & 1, pn & 3)
        E = [f"v_exp_f32 v{S[t]+r}, v{S[t]+r}" for r in range(16)]
        if n & 7 == 7:
            A("s_waitcnt vmcnt(0)")
        A(q[0])
        if n == 1:
            for x in kv_loads(1, True): A(x)
            A(f"s_add_u32 s{sKO}, s{sKO}, 2048\ns_add_u32 s{sVO}, s{sVO}, 5120")
        if n == 9:
            for x in kv_loads(0, False): A(x)
            A(f"s_cmp_lt_u32 s{sKO}, 16384")
        for x in E[0:4]: A(x)
        A(q[1])
        for x in E[4:8]: A(x)
        A(p[0])
        for x in E[8:12]: A(x)
        A(p[1])
        for x in E[12:16]: A(x)
    A(f"s_cbranch_scc1 {loop}")
    p = pv(1, 1, 3)
    A(p[0]); A(p[1])
    A(f"""s_mul_i32 s{sT0}, s{sw}, 6144
          s_xor_b32 s{sT2}, s{sw}, 2
          s_mul_i32 s{sT2}, s{sT2}, 6144
          v_lshlrev_b32 v{t0}, 4, v{lane}
          v_add_u32 v{t1}, s{sT2}, v{t0}
          v_add_u32 v{t0}, s{sT0}, v{t0}""")
    for t in range(2):
        for qd in range(3):
            A(f"ds_write_b128 v{t0}, {v(O[t]+4*qd,4)} offset:{(3*t+qd)*1024}")
    A("s_waitcnt lgkmcnt(0)\ns_barrier")
    for t in range(2):
        for qd in range(3):
            A(f"ds_read_b128 {v(S[t]+4*qd,4)}, v{t1} offset:{(3*t+qd)*1024}")
    A(f"""s_lshl_b32 s{sT0}, s{sh}, 16
          s_add_u32 s{sT0}, s{sT0}, s{sT1}
          s_add_u32 s{sT0}, s{sT0}, {WS_OM}
          v_lshlrev_b32 v{t0}, 15, v{hb}
          v_lshl_add_u32 v{t0}, v{rho}, 4, v{t0}
          v_add_u32 v{aKm}, s{sT0}, v{t0}
          s_lshl_b32 s{sT0}, s{sh}, 14
          s_lshr_b32 s{sT2}, s{sT1}, 1
          s_add_u32 s{sT0}, s{sT0}, s{sT2}
          s_add_u32 s{sT0}, s{sT0}, {WS_OT}
          v_lshlrev_b32 v{t0}, 3, v{lane}
          v_add_u32 v{aKt}, s{sT0}, v{t0}
          s_waitcnt lgkmcnt(0)""")
    for t in range(2):
        b = O[2+t]
        for r in range(0, 12, 2):
            A(f"v_pk_add_f32 {v(b+r,2)}, {v(b+r,2)}, {v(S[t]+r,2)}")
    lreg = [S[2], S[2]+2]
    for t in range(2):
        b = O[2+t]; l = lreg[t]
        A(f"v_mov_b32 v{l}, v{b+8}\nv_mov_b32 v{l+1}, v{b+8}")
    A("s_nop 0")
    for t in range(2):
        l = lreg[t]
        A(f"v_permlane32_swap_b32 v{l+1}, v{l}")
    for t in range(2):
        l = lreg[t]
        A(f"v_rcp_f32 v{l+1}, v{l}")
    A("s_nop 0")
    for t in range(2):
        b = O[2+t]; l = lreg[t]
        for r in range(0, 12, 2):
            A(f"v_pk_mul_f32 {v(b+r,2)}, {v(b+r,2)}, {v(l,2)} op_sel:[0,1] op_sel_hi:[1,1]")
        for r in range(6):
            A(f"v_cvt_pk_bf16_f32 v{b+r}, v{b+2*r}, v{b+2*r+1}")
        A(f"buffer_store_dwordx4 {v(b,4)}, v{aKm}, {W}, 0 offen offset:{512*t}")
    A(f"""s_nop 0
          v_permlane32_swap_b32 v{O[2]+4}, v{O[3]+4}
          v_permlane32_swap_b32 v{O[2]+5}, v{O[3]+5}
          buffer_store_dwordx2 {v(O[2]+4,2)}, v{aKt}, {W}, 0 offen""")
    A.label(done)
    A("s_endpgm")
    return dict(label=label, grid=256, block=256, lds=B_LDS, vgpr=V.hi, acc=(V.hi+3)//4*4)
```

```python
from common import *

def kernel_C(A, label):
    kernel_header(A, label)
    sWS, sWO, sX = 4, 8, 12
    sw, srb, scb, sT0, sT1, sT2, sM = 16, 17, 18, 19, 20, 21, 22
    V = Alloc(1, 256)
    lane = V(); tok = V(); g = V(); t0 = V(); t1 = V(); t2 = V()
    dW = V(5); aO = V(); aT = V(); aXH = V(); aA = V(2); aAt = V(2)
    xr = V(10, 2)
    B = V(80, 4)
    Fr = V(40, 4)
    acc = V(20, 4)
    done = label + "_done"
    W = f"s[{sWS}:{sWS+3}]"
    A(f"""s_load_dwordx2 s[{sWS}:{sWS+1}], s[0:1], {KA_WS}
          s_load_dwordx2 s[{sWO}:{sWO+1}], s[0:1], {KA_WO}
          s_load_dwordx2 s[{sX}:{sX+1}], s[0:1], {KA_X}
          s_cmp_ge_u32 s2, 256
          s_cbranch_scc1 {done}
          v_lshrrev_b32 v{t0}, 6, v0
          v_and_b32 v{lane}, 63, v0
          v_readfirstlane_b32 s{sw}, v{t0}
          s_and_b32 s{sT0}, s2, 7
          s_lshl_b32 s{srb}, s{sT0}, 2
          s_lshr_b32 s{sT0}, s2, 6
          s_add_u32 s{srb}, s{srb}, s{sT0}
          s_bfe_u32 s{scb}, s2, 0x30003
          v_and_b32 v{tok}, 15, v{lane}
          v_lshrrev_b32 v{g}, 4, v{lane}""")
    srd(A, sWS, WS_SIZE); srd(A, sWO, 819200); srd(A, sX, 2621440)
    A(f"""s_mul_i32 s{sT0}, s{sw}, {160*1280}
          s_mul_i32 s{sT1}, s{scb}, 160
          s_add_u32 s{sT0}, s{sT0}, s{sT1}""")
    for i in range(5):
        A(f"""v_add_u32 v{t0}, {64*i}, v{lane}
              v_mul_u32_u24 v{t1}, 6554, v{t0}
              v_lshrrev_b32 v{t1}, 16, v{t1}
              v_mul_u32_u24 v{t2}, {1280-160}, v{t1}
              v_lshl_add_u32 v{t2}, v{t0}, 4, v{t2}
              v_add_u32 v{dW+i}, s{sT0}, v{t2}""")
    A(f"""s_lshl_b32 s{sT0}, s{srb}, 6
          s_lshl_b32 s{sT2}, s{sw}, 4
          s_add_u32 s{sT0}, s{sT0}, s{sT2}
          v_add_u32 v{t0}, s{sT0}, v{tok}
          v_lshlrev_b32 v{t1}, 15, v{g}
          v_lshl_add_u32 v{aO}, v{t0}, 4, v{t1}
          v_add_u32 v{aO}, {WS_OM}, v{aO}
          v_lshrrev_b32 v{t1}, 1, v{g}
          v_and_b32 v{t2}, 1, v{g}
          v_lshl_add_u32 v{t1}, v{t1}, 2, v{t2}
          v_lshlrev_b32 v{t2}, 14, v{t1}
          v_lshl_add_u32 v{aT}, v{t0}, 3, v{t2}
          v_add_u32 v{aT}, {WS_OT}, v{aT}
          v_mul_u32_u24 v{aXH}, 1280, v{t0}
          v_mul_u32_u24 v{t2}, 40, v{g}
          v_add3_u32 v{aXH}, v{aXH}, v{t2}, s{sT1}""")
    A(f"""v_bfe_u32 v{t0}, v{lane}, 2, 2
          v_and_b32 v{t2}, 3, v{lane}
          v_mul_u32_u24 v{t2}, 40, v{t2}
          v_mad_u32_u24 v{t2}, v{t0}, 64, v{t2}
          v_mad_u32_u24 v{t2}, v{t0}, 64, v{t2}
          v_mad_u32_u24 v{t2}, v{t0}, 32, v{t2}
          v_mul_u32_u24 v{t1}, {20*160}, v{t1}
          v_add_u32 v{aAt}, v{t1}, v{t2}
          v_add_u32 v{aAt}, {16*160}, v{aAt}
          v_add_u32 v{aAt+1}, {320*160}, v{aAt}
          v_lshrrev_b32 v{t0}, 1, v{g}
          v_mul_u32_u24 v{t0}, {20*160}, v{t0}
          v_add_u32 v{t2}, v{t2}, v{t0}
          v_and_b32 v{t0}, 1, v{g}
          v_mul_u32_u24 v{t1}, {12*160}, v{t0}
          v_add_u32 v{aA}, v{t2}, v{t1}
          v_mul_u32_u24 v{t1}, {4*160}, v{t0}
          v_add_u32 v{aA+1}, v{t2}, v{t1}
          v_add_u32 v{aA+1}, {4*160}, v{aA+1}
          s_mul_i32 s{sM}, s{sw}, 25600
          s_mov_b32 s{sT0}, 0
          s_waitcnt lgkmcnt(0)""")
    for gi in range(5):
        for i in range(5):
            A(f"""s_add_u32 m0, s{sM}, {gi*5120 + i*1024}
                  s_mov_b32 s{sT0}, {gi*32*1280}
                  buffer_load_dwordx4 v{dW+i}, s[{sWO}:{sWO+3}], s{sT0} offen lds""")
    for s_ in range(16):
        A(f"s_mov_b32 s{sT0}, {s_*4*32768}\nbuffer_load_dwordx4 {v(B+4*s_,4)}, v{aO}, {W}, s{sT0} offen")
    for s_ in range(4):
        for t in range(2):
            A(f"s_mov_b32 s{sT0}, {(8*s_+2*t)*16384}\nbuffer_load_dwordx2 {v(B+64+4*s_+2*t,2)}, v{aT}, {W}, s{sT0} offen")
    A(f"""buffer_load_dwordx4 {v(xr,4)}, v{aXH}, s[{sX}:{sX+3}], 0 offen
          buffer_load_dwordx4 {v(xr+4,4)}, v{aXH}, s[{sX}:{sX+3}], 0 offen offset:16
          buffer_load_dwordx2 {v(xr+8,2)}, v{aXH}, s[{sX}:{sX+3}], 0 offen offset:32""")
    for r in range(20): A(f"v_mov_b32 v{acc+r}, 0")
    A("s_waitcnt vmcnt(27)\ns_barrier")
    def reads(s_):
        f = Fr + 20*(s_ & 1); L = []
        for ct in range(5):
            for t in range(2):
                if s_ < 16:
                    L.append(f"ds_read_b64_tr_b16 {v(f+4*ct+2*t,2)}, v{aA+t} offset:{(s_ & 7)*40*160 + 8*ct}")
                else:
                    q = s_ - 16
                    L.append(f"ds_read_b64_tr_b16 {v(f+4*ct+2*t,2)}, v{aAt+(q>>1)} offset:{((q&1)*160 + 40*t)*160 + 8*ct}")
        return L
    for x in reads(0): A(x)
    A("s_waitcnt vmcnt(0)")
    for s_ in range(20):
        f = Fr + 20*(s_ & 1)
        if s_ == 7:
            A(f"v_add_u32 v{aA}, {320*160}, v{aA}\nv_add_u32 v{aA+1}, {320*160}, v{aA+1}")
        R = reads(s_+1) if s_ < 19 else []
        A("s_waitcnt lgkmcnt(0)")
        for ct in range(5):
            A(f"v_mfma_f32_16x16x32_bf16 {v(acc+4*ct,4)}, {v(f+4*ct,4)}, {v(B+4*s_,4)}, {v(acc+4*ct,4)}")
            for x in R[2*ct:2*ct+2]: A(x)
    A("s_nop 7")
    for r in range(10):
        A(f"v_cvt_pk_bf16_f32 v{t0}, v{acc+2*r}, v{acc+2*r+1}")
        unpack(A, acc+2*r, acc+2*r+1, t0)
        unpack(A, t1, t2, xr+r)
        A(f"""v_add_f32 v{t1}, v{t1}, v{acc+2*r}
              v_add_f32 v{t2}, v{t2}, v{acc+2*r+1}
              v_cvt_pk_bf16_f32 v{xr+r}, v{t1}, v{t2}""")
    A(f"""s_mov_b32 s{sT0}, {WS_H}
          buffer_store_dwordx4 {v(xr,4)}, v{aXH}, {W}, s{sT0} offen
          buffer_store_dwordx4 {v(xr+4,4)}, v{aXH}, {W}, s{sT0} offen offset:16
          buffer_store_dwordx2 {v(xr+8,2)}, v{aXH}, {W}, s{sT0} offen offset:32""")
    A.label(done)
    A("s_endpgm")
    return dict(label=label, grid=256, block=256, lds=102400, vgpr=V.hi, acc=(V.hi+3)//4*4)

def kernel_D(A, label):
    kernel_header(A, label)
    sWS, sWR, sO = 4, 8, 12
    sw, srow, sT0, sT1 = 16, 17, 18, 19
    V = Alloc(1, 256)
    lane = V(); a4 = V(); a1 = V(); t0 = V(); t1 = V(); t2 = V(); t3 = V()
    wr = V(6, 2); hp = V(6, 2); wf = V(10); hf = V(10); st = V(4); tm = V(4); lp = V(6, 2)
    done = label + "_done"
    W = f"s[{sWS}:{sWS+3}]"
    A(f"""s_load_dwordx2 s[{sWS}:{sWS+1}], s[0:1], {KA_WS}
          s_load_dwordx2 s[{sWR}:{sWR+1}], s[0:1], {KA_WR}
          s_load_dwordx2 s[{sO}:{sO+1}], s[0:1], {KA_OUT}
          s_cmp_ge_u32 s2, 512
          s_cbranch_scc1 {done}
          v_lshrrev_b32 v{t0}, 6, v0
          v_and_b32 v{lane}, 63, v0
          v_readfirstlane_b32 s{sw}, v{t0}
          v_lshlrev_b32 v{a4}, 4, v{lane}
          v_lshlrev_b32 v{a1}, 2, v{lane}
          s_lshl_b32 s{srow}, s2, 2
          s_add_u32 s{srow}, s{srow}, s{sw}
          s_mul_i32 s{sT0}, s{srow}, 1280
          s_add_u32 s{sT1}, s{sT0}, {WS_H}""")
    srd(A, sWS, WS_SIZE); srd(A, sWR, 1280); srd(A, sO, 2621440)
    A(f"""s_waitcnt lgkmcnt(0)
          buffer_load_dwordx4 {v(hp,4)}, v{a4}, {W}, s{sT1} offen
          buffer_load_dword v{hp+4}, v{a1}, {W}, s{sT1} offen offset:1024
          buffer_load_dwordx4 {v(wr,4)}, v{a4}, s[{sWR}:{sWR+3}], 0 offen
          buffer_load_dword v{wr+4}, v{a1}, s[{sWR}:{sWR+3}], 0 offen offset:1024
          s_waitcnt vmcnt(0)""")
    for r in range(5):
        unpack(A, hf+2*r, hf+2*r+1, hp+r); unpack(A, wf+2*r, wf+2*r+1, wr+r)
    for q in range(4): A(f"v_mov_b32 v{st+q}, 0")
    for r in range(10):
        A(f"""v_add_f32 v{st}, v{st}, v{hf+r}
              v_fmac_f32 v{st+1}, v{hf+r}, v{hf+r}
              v_fmac_f32 v{st+2}, v{hf+r}, v{wf+r}
              v_add_f32 v{st+3}, v{st+3}, v{wf+r}""")
    R4 = [st+q for q in range(4)]; T4 = [tm+q for q in range(4)]
    allreduce16(A, "v_add_f32", R4); allreduce_x(A, "v_add_f32", R4, T4, "16"); allreduce_x(A, "v_add_f32", R4, T4, "32")
    A(f"""v_mul_f32 v{st}, {f32(1/640)}, v{st}
          v_mul_f32 v{t0}, v{st}, v{st}
          v_mov_b32 v{t1}, {f32(1/640)}
          v_fma_f32 v{t0}, v{st+1}, v{t1}, -v{t0}
          v_max_f32 v{t0}, 0, v{t0}
          v_add_f32 v{t0}, {f32(1e-5)}, v{t0}
          v_rsq_f32 v{t0}, v{t0}
          v_fma_f32 v{t1}, -v{st}, v{st+3}, v{st+2}
          v_mul_f32 v{t1}, v{t1}, v{t0}""")
    for r in range(5):
        A(f"""v_sub_f32 v{t2}, v{hf+2*r}, v{st}
              v_sub_f32 v{t3}, v{hf+2*r+1}, v{st}
              v_mul_f32 v{t2}, v{t2}, v{t0}
              v_mul_f32 v{t3}, v{t3}, v{t0}
              v_cvt_pk_bf16_f32 v{lp+r}, v{t2}, v{t3}""")
        unpack(A, t2, t3, lp+r)
        A(f"""v_add_f32 v{t2}, v{t2}, v{hf+2*r}
              v_add_f32 v{t3}, v{t3}, v{hf+2*r+1}
              v_cvt_pk_bf16_f32 v{hp+r}, v{t2}, v{t3}""")
    A(f"""v_ashrrev_i32 v{t2}, 31, v{t1}
          v_or_b32 v{t2}, 0x80000000, v{t2}
          v_xor_b32 v{t2}, v{t2}, v{t1}
          v_and_b32 v{t2}, 0xfffff800, v{t2}
          s_sub_u32 s{sT1}, 2047, s{srow}
          v_or_b32 v{t2}, s{sT1}, v{t2}
          buffer_store_dwordx4 {v(hp,4)}, v{a4}, s[{sO}:{sO+3}], s{sT0} offen
          buffer_store_dword v{hp+4}, v{a1}, s[{sO}:{sO+3}], s{sT0} offen offset:1024
          s_add_u32 s{sT1}, s{sT0}, {WS_L2}
          buffer_store_dwordx4 {v(lp,4)}, v{a4}, {W}, s{sT1} offen
          buffer_store_dword v{lp+4}, v{a1}, {W}, s{sT1} offen offset:1024
          s_lshl_b32 s{sT1}, s{srow}, 2
          s_add_u32 s{sT1}, s{sT1}, {WS_KEY}
          v_mov_b32 v{t3}, 0
          s_mov_b64 exec, 1
          buffer_store_dword v{t2}, v{t3}, {W}, s{sT1} offen""")
    A.label(done)
    A("s_endpgm")
    return dict(label=label, grid=512, block=256, lds=0, vgpr=V.hi, acc=(V.hi+3)//4*4)

def top2_from_keys(A, W, lane, kk, m1, m2, t0, t1, sK1, sK2, sT0):
    A(f"v_lshlrev_b32 v{t0}, 4, v{lane}\ns_mov_b32 s{sT0}, {WS_KEY}")
    for i in range(8):
        if i == 4: A(f"s_mov_b32 s{sT0}, {WS_KEY+4096}")
        A(f"buffer_load_dwordx4 {v(kk+4*i,4)}, v{t0}, {W}, s{sT0} offen offset:{1024*(i&3)}")
    A(f"s_waitcnt vmcnt(0)\nv_max_u32 v{m1}, v{kk}, v{kk+1}\nv_min_u32 v{m2}, v{kk}, v{kk+1}")
    for i in range(2, 32):
        A(f"v_med3_u32 v{m2}, v{m1}, v{m2}, v{kk+i}\nv_max_u32 v{m1}, v{m1}, v{kk+i}")
    A(f"v_mov_b32 v{t0}, v{m1}")
    allreduce16(A, "v_max_u32", [t0]); allreduce_x(A, "v_max_u32", [t0], [t1], "16"); allreduce_x(A, "v_max_u32", [t0], [t1], "32")
    A(f"v_cmp_eq_u32 vcc, v{t0}, v{m1}\nv_readfirstlane_b32 s{sK1}, v{t0}\ns_nop 0\nv_cndmask_b32 v{t0}, v{m1}, v{m2}, vcc")
    allreduce16(A, "v_max_u32", [t0]); allreduce_x(A, "v_max_u32", [t0], [t1], "16"); allreduce_x(A, "v_max_u32", [t0], [t1], "32")
    A(f"s_nop 0\nv_readfirstlane_b32 s{sK2}, v{t0}")

def kernel_E(A, label):
    kernel_header(A, label)
    sWS, sG, sU = 4, 8, 12
    sw, sT0, sT1, sK1, sK2, sMK = 16, 17, 18, 19, 20, 22
    V = Alloc(1, 256)
    lane = V(); g = V(); t0 = V(); t1 = V(); t2 = V(); m1 = V(); m2 = V(); dW = V(); aA = V(); aB = V()
    kk = V(32, 4); Fr = V(20, 4); B = V(20, 4); acc = V(4, 4); red = V(16, 4)
    done = label + "_done"
    W = f"s[{sWS}:{sWS+3}]"
    A(f"""s_load_dwordx2 s[{sWS}:{sWS+1}], s[0:1], {KA_WS}
          s_load_dwordx2 s[{sG}:{sG+1}], s[0:1], {KA_WG}
          s_load_dwordx2 s[{sU}:{sU+1}], s[0:1], {KA_WU}
          s_cmp_ge_u32 s2, 192
          s_cbranch_scc1 {done}
          v_lshrrev_b32 v{t0}, 6, v0
          v_and_b32 v{lane}, 63, v0
          v_readfirstlane_b32 s{sw}, v{t0}
          v_lshrrev_b32 v{g}, 4, v{lane}""")
    srd(A, sWS, WS_SIZE); srd(A, sG, 640*3072); srd(A, sU, 640*3072)
    A(f"""s_and_b32 s{sT0}, s2, 7
          s_mul_i32 s{sT0}, s{sT0}, 24
          s_lshr_b32 s{sT1}, s2, 3
          s_add_u32 s2, s{sT0}, s{sT1}
          s_mul_i32 s{sT0}, s{sw}, {160*3072}
          s_lshl_b32 s{sT1}, s2, 4
          s_add_u32 s{sT0}, s{sT0}, s{sT1}
          v_mul_u32_u24 v{dW}, 3072, v{lane}
          v_add_u32 v{dW}, s{sT0}, v{dW}
          s_mul_i32 s{sT1}, s{sw}, 6144
          s_waitcnt lgkmcnt(0)""")
    for m, sr in ((0, sG), (1, sU)):
        for i in range(3):
            A(f"""s_add_u32 m0, s{sT1}, {m*3072 + i*1024}
                  s_mov_b32 s{sT0}, {i*64*3072}
                  buffer_load_dwordx4 v{dW}, s[{sr}:{sr+3}], s{sT0} offen lds""")
    top2_from_keys(A, W, lane, kk, m1, m2, t0, t1, sK1, sK2, sT0)
    A(f"""s_and_b32 s{sK1}, s{sK1}, 2047
          s_and_b32 s{sK2}, s{sK2}, 2047
          s_sub_u32 s{sK1}, 2047, s{sK1}
          s_sub_u32 s{sK2}, 2047, s{sK2}
          s_mul_i32 s{sK1}, s{sK1}, 1280
          s_mul_i32 s{sK2}, s{sK2}, 1280
          v_and_b32 v{t0}, 1, v{lane}
          v_cmp_eq_u32 vcc, 1, v{t0}
          v_mov_b32 v{t1}, s{sK1}
          v_mov_b32 v{t2}, s{sK2}
          v_cndmask_b32 v{aB}, v{t1}, v{t2}, vcc
          v_lshl_add_u32 v{aB}, v{g}, 4, v{aB}
          s_mul_i32 s{sT0}, s{sw}, 320
          s_add_u32 s{sT0}, s{sT0}, {WS_L2}""")
    for s_ in range(5):
        A(f"buffer_load_dwordx4 {v(B+4*s_,4)}, v{aB}, {W}, s{sT0} offen offset:{64*s_}")
    A(f"""v_bfe_u32 v{t0}, v{lane}, 2, 2
          v_lshl_add_u32 v{t0}, v{g}, 3, v{t0}
          v_lshlrev_b32 v{t0}, 4, v{t0}
          v_and_b32 v{t1}, 1, v{lane}
          v_lshl_add_u32 v{t0}, v{t1}, 3, v{t0}
          v_bfe_u32 v{t1}, v{lane}, 1, 1
          v_mul_u32_u24 v{t1}, 3072, v{t1}
          v_add3_u32 v{aA}, v{t0}, v{t1}, s{sT1}""")
    for s_ in range(5):
        for t in range(2):
            A(f"ds_read_b64_tr_b16 {v(Fr+4*s_+2*t,2)}, v{aA} offset:{(32*s_+4*t)*16}")
    A("s_waitcnt vmcnt(0) lgkmcnt(0)")
    for s_ in range(5):
        A(f"v_mfma_f32_16x16x32_bf16 {v(acc,4)}, {v(Fr+4*s_,4)}, {v(B+4*s_,4)}, {'0' if s_ == 0 else v(acc,4)}")
    A(f"""s_lshl_b32 s{sT0}, s{sw}, 10
          s_add_u32 s{sT0}, s{sT0}, 24576
          v_lshlrev_b32 v{t0}, 4, v{lane}
          v_add_u32 v{t1}, s{sT0}, v{t0}
          s_nop 3
          ds_write_b128 v{t1}, {v(acc,4)}
          s_waitcnt lgkmcnt(0)
          s_barrier
          s_cmp_lg_u32 s{sw}, 0
          s_cbranch_scc1 {done}""")
    for w in range(4):
        A(f"ds_read_b128 {v(red+4*w,4)}, v{t0} offset:{24576+1024*w}")
    A("s_waitcnt lgkmcnt(0)")
    for i in range(4):
        A(f"""v_add_f32 v{red+i}, v{red+i}, v{red+4+i}
              v_add_f32 v{red+8+i}, v{red+8+i}, v{red+12+i}
              v_add_f32 v{red+i}, v{red+i}, v{red+8+i}""")
    for i in range(2):
        A(f"v_cvt_pk_bf16_f32 v{t0}, v{red+2*i}, v{red+2*i+1}")
        unpack(A, red+2*i, red+2*i+1, t0)
    for i in range(4): A(f"v_mov_b32 v{red+4+i}, v{red+i}")
    A("s_nop 0")
    for i in range(4): A(f"v_permlane32_swap_b32 v{red+i}, v{red+4+i}")
    for i in range(4):
        A(f"""v_mul_f32 v{t0}, {f32(-math.log2(math.e))}, v{red+i}
              v_exp_f32 v{t0}, v{t0}
              s_nop 0
              v_add_f32 v{t0}, 1.0, v{t0}
              v_rcp_f32 v{t0}, v{t0}
              s_nop 0
              v_mul_f32 v{red+i}, v{red+i}, v{t0}""")
    for i in range(2):
        A(f"v_cvt_pk_bf16_f32 v{t0}, v{red+2*i}, v{red+2*i+1}")
        unpack(A, red+2*i, red+2*i+1, t0)
        A(f"""v_mul_f32 v{red+2*i}, v{red+2*i}, v{red+4+2*i}
              v_mul_f32 v{red+2*i+1}, v{red+2*i+1}, v{red+5+2*i}
              v_cvt_pk_bf16_f32 v{acc+i}, v{red+2*i}, v{red+2*i+1}""")
    A(f"""v_and_b32 v{t0}, 1, v{lane}
          v_mul_u32_u24 v{t0}, 3072, v{t0}
          v_lshl_add_u32 v{t0}, v{g}, 3, v{t0}
          s_lshl_b32 s{sT0}, s2, 4
          s_add_u32 s{sT0}, s{sT0}, {WS_ACT}
          s_mov_b64 exec, 0x30003
          buffer_store_dwordx2 {v(acc,2)}, v{t0}, {W}, s{sT0} offen""")
    A.label(done)
    A("s_endpgm")
    return dict(label=label, grid=192, block=256, lds=28672, vgpr=V.hi, acc=(V.hi+3)//4*4)

def kernel_F(A, label):
    kernel_header(A, label)
    sWS, sD, sO = 4, 8, 12
    sw, sT0, sT1, sK1, sK2, sR1, sR2 = 16, 17, 18, 19, 20, 21, 22
    V = Alloc(1, 256)
    lane = V(); g = V(); t0 = V(); t1 = V(); t2 = V(); m1 = V(); m2 = V(); dW = V(); aA = V(); aB = V(); aR = V(); sig = V()
    kk = V(32, 4); Fr = V(48, 4); B = V(48, 4); acc = V(4, 4); red = V(16, 4); hh = V(2); ll = V(2)
    done = label + "_done"
    W = f"s[{sWS}:{sWS+3}]"
    A(f"""s_load_dwordx2 s[{sWS}:{sWS+1}], s[0:1], {KA_WS}
          s_load_dwordx2 s[{sD}:{sD+1}], s[0:1], {KA_WD}
          s_load_dwordx2 s[{sO}:{sO+1}], s[0:1], {KA_OUT}
          s_cmp_ge_u32 s2, 40
          s_cbranch_scc1 {done}
          v_lshrrev_b32 v{t0}, 6, v0
          v_and_b32 v{lane}, 63, v0
          v_readfirstlane_b32 s{sw}, v{t0}
          v_lshrrev_b32 v{g}, 4, v{lane}""")
    srd(A, sWS, WS_SIZE); srd(A, sD, 1536*1280); srd(A, sO, 2621440)
    A(f"""s_mul_i32 s{sT0}, s{sw}, {384*1280}
          s_lshl_b32 s{sT1}, s2, 5
          s_add_u32 s{sT0}, s{sT0}, s{sT1}
          v_lshrrev_b32 v{t0}, 1, v{lane}
          v_mul_u32_u24 v{dW}, 1280, v{t0}
          v_and_b32 v{t0}, 1, v{lane}
          v_lshl_add_u32 v{dW}, v{t0}, 4, v{dW}
          v_add_u32 v{dW}, s{sT0}, v{dW}
          s_mul_i32 s{sT1}, s{sw}, 12288
          v_mul_u32_u24 v{aB}, 3072, v{t0}
          v_lshl_add_u32 v{aB}, v{g}, 4, v{aB}
          s_waitcnt lgkmcnt(0)""")
    for i in range(12):
        A(f"""s_add_u32 m0, s{sT1}, {i*1024}
              s_mov_b32 s{sT0}, {i*32*1280}
              buffer_load_dwordx4 v{dW}, s[{sD}:{sD+3}], s{sT0} offen lds""")
    A(f"s_mul_i32 s{sT0}, s{sw}, 768\ns_add_u32 s{sT0}, s{sT0}, {WS_ACT}")
    for s_ in range(12):
        A(f"buffer_load_dwordx4 {v(B+4*s_,4)}, v{aB}, {W}, s{sT0} offen offset:{64*s_}")
    top2_from_keys(A, W, lane, kk, m1, m2, t0, t1, sK1, sK2, sT0)
    A(f"""v_and_b32 v{t0}, 1, v{lane}
          v_cmp_eq_u32 vcc, 1, v{t0}
          v_mov_b32 v{t1}, s{sK1}
          v_mov_b32 v{t2}, s{sK2}
          v_cndmask_b32 v{t1}, v{t1}, v{t2}, vcc
          v_and_b32 v{t2}, 2047, v{t1}
          v_sub_u32 v{t2}, 2047, v{t2}
          v_mul_u32_u24 v{aR}, 1280, v{t2}
          v_lshl_add_u32 v{aR}, v{g}, 3, v{aR}
          s_lshl_b32 s{sT0}, s2, 5
          v_add_u32 v{aR}, s{sT0}, v{aR}
          s_mov_b32 s{sR1}, {WS_H}
          s_mov_b32 s{sR2}, {WS_L2}
          buffer_load_dwordx2 {v(hh,2)}, v{aR}, {W}, s{sR1} offen
          buffer_load_dwordx2 {v(ll,2)}, v{aR}, {W}, s{sR2} offen
          v_not_b32 v{t2}, v{t1}
          v_ashrrev_i32 v{t2}, 31, v{t2}
          v_or_b32 v{t2}, 0x80000000, v{t2}
          v_xor_b32 v{t1}, v{t2}, v{t1}
          v_mul_f32 v{t1}, {f32(-math.log2(math.e))}, v{t1}
          v_exp_f32 v{t1}, v{t1}
          s_nop 0
          v_add_f32 v{t1}, 1.0, v{t1}
          v_rcp_f32 v{sig}, v{t1}
          v_bfe_u32 v{t0}, v{lane}, 2, 2
          v_lshl_add_u32 v{t0}, v{g}, 3, v{t0}
          v_lshlrev_b32 v{t0}, 5, v{t0}
          v_and_b32 v{t1}, 3, v{lane}
          v_lshl_add_u32 v{t0}, v{t1}, 3, v{t0}
          v_add_u32 v{aA}, s{sT1}, v{t0}""")
    for s_ in range(12):
        for t in range(2):
            A(f"ds_read_b64_tr_b16 {v(Fr+4*s_+2*t,2)}, v{aA} offset:{(32*s_+4*t)*32}")
    A("s_waitcnt vmcnt(0) lgkmcnt(0)")
    for s_ in range(12):
        A(f"v_mfma_f32_16x16x32_bf16 {v(acc,4)}, {v(Fr+4*s_,4)}, {v(B+4*s_,4)}, {'0' if s_ == 0 else v(acc,4)}")
    A(f"""s_lshl_b32 s{sT0}, s{sw}, 10
          s_add_u32 s{sT0}, s{sT0}, 49152
          v_lshlrev_b32 v{t0}, 4, v{lane}
          v_add_u32 v{t1}, s{sT0}, v{t0}
          s_nop 3
          ds_write_b128 v{t1}, {v(acc,4)}
          s_waitcnt lgkmcnt(0)
          s_barrier
          s_cmp_lg_u32 s{sw}, 0
          s_cbranch_scc1 {done}""")
    for w in range(4):
        A(f"ds_read_b128 {v(red+4*w,4)}, v{t0} offset:{49152+1024*w}")
    A("s_waitcnt lgkmcnt(0)")
    for i in range(4):
        A(f"""v_add_f32 v{red+i}, v{red+i}, v{red+4+i}
              v_add_f32 v{red+8+i}, v{red+8+i}, v{red+12+i}
              v_add_f32 v{red+i}, v{red+i}, v{red+8+i}""")
    for i in range(2):
        unpack(A, t0, t1, ll+i)
        A(f"""v_fmac_f32 v{t0}, v{red+2*i}, v{sig}
              v_fmac_f32 v{t1}, v{red+2*i+1}, v{sig}
              v_cvt_pk_bf16_f32 v{t2}, v{t0}, v{t1}""")
        unpack(A, t0, t1, t2)
        unpack(A, red+4, red+5, hh+i)
        A(f"""v_add_f32 v{t0}, v{t0}, v{red+4}
              v_add_f32 v{t1}, v{t1}, v{red+5}
              v_cvt_pk_bf16_f32 v{acc+i}, v{t0}, v{t1}""")
    A(f"""s_mov_b32 exec_lo, 0x30003
          s_mov_b32 exec_hi, 0x30003
          buffer_store_dwordx2 {v(acc,2)}, v{aR}, s[{sO}:{sO+3}], 0 offen""")
    A.label(done)
    A("s_endpgm")
    return dict(label=label, grid=40, block=256, lds=53248, vgpr=V.hi, acc=(V.hi+3)//4*4)
```

```python
from build import *
from kA import kernel_A
from kB import kernel_B
from kC import *
if __name__ == "__main__":
    K = [(kernel_A, "pa_kernel"), (kernel_B, "pb_kernel"), (kernel_C, "pc_kernel"), (kernel_D, "pd_kernel"), (kernel_E, "pe_kernel"), (kernel_F, "pf_kernel")]
    for k, i in build(K, "out1.s").items(): print(i)
```

```python
from build import *
from kA import kernel_A
from kB import kernel_B
from kC import *
def kernel_nop(A, label):
    kernel_header(A, label)
    A("s_endpgm")
    return dict(label=label, grid=256, block=256, lds=0, vgpr=8, acc=8)
K = [(kernel_A, "pa_kernel"), (kernel_B, "pb_kernel"), (kernel_C, "pc_kernel"), (kernel_D, "pd_kernel"), (kernel_E, "pe_kernel"), (kernel_F, "pf_kernel"), (kernel_nop, "pn_kernel")]
base = ["pa_kernel", "pb_kernel", "pc_kernel", "pd_kernel", "pe_kernel", "pf_kernel"]
build(K, "v_base.s", base)
build(K, "v_nop6.s", base + ["pn_kernel"]*6)
build(K, "v_b2.s", base[:2] + base[1:])
build(K, "v_a2.s", base[:1] + base)
build(K, "v_twice.s", base + base)
build(K, "v_pre.s", ["pn_kernel"] + base)
```

```python
from asmlib import *
import struct, math
NAME = "sequential_preLN__mha_block__moe_arch_mod__prompt"
KA_X, KA_WQKV, KA_WO, KA_BX, KA_WR, KA_WG, KA_WU, KA_WD, KA_OUT, KA_DBG, KA_WS = [8*i for i in range(11)]
WS_QK = 0
WS_V  = 0x500000
WS_OM = 0x780000
WS_OT = 0x980000
WS_H  = 0xA00000
WS_MISC = 0xC80000
WS_SIZE = 0x1000000
QSCALE = math.log2(math.e) / math.sqrt(20.0)
def f32(x):
    return "0x%08x" % struct.unpack("<I", struct.pack("<f", x))[0]

def srd(A, b, nbytes):
    A(f"s_mov_b32 s{b+2}, {nbytes}\ns_mov_b32 s{b+3}, 0x20000")

def kernel_header(A, label):
    A(f".globl {label}\n.p2align 8\n.type {label},@function")
    A.label(label)

def descriptor(label, vgpr, acc, sgpr=102):
    return f""".amdhsa_kernel {label}
  .amdhsa_next_free_vgpr {vgpr}
  .amdhsa_next_free_sgpr {sgpr}
  .amdhsa_accum_offset {acc}
  .amdhsa_group_segment_fixed_size 0
  .amdhsa_kernarg_size 88
  .amdhsa_user_sgpr_count 2
  .amdhsa_user_sgpr_kernarg_segment_ptr 1
  .amdhsa_system_sgpr_workgroup_id_x 1
.end_amdhsa_kernel
"""

def swap23(A, dst, src, t0, t1):
    A(f"""v_lshrrev_b32 v{t0}, 1, v{src}
          v_xor_b32 v{t0}, v{t0}, v{src}
          v_and_b32 v{t0}, 4, v{t0}
          v_mul_u32_u24 v{t1}, 3, v{t0}
          v_xor_b32 v{dst}, v{t1}, v{src}""")

WS_L2  = 0xD00000
WS_KEY = 0xC80000
WS_ACT = 0xC90000

def allreduce16(A, op, regs):
    for ror in (8, 4, 2, 1):
        if len(regs) < 3: A(f"s_nop {2-len(regs)}")
        for r in regs:
            A(f"{op}_dpp v{r}, v{r}, v{r} row_ror:{ror} row_mask:0xf bank_mask:0xf")

def allreduce_x(A, op, regs, tmps, which):
    for r, t in zip(regs, tmps):
        A(f"v_mov_b32 v{t}, v{r}")
    A("s_nop 1")
    for r, t in zip(regs, tmps):
        A(f"v_permlane{which}_swap_b32 v{r}, v{t}")
    for r, t in zip(regs, tmps):
        A(f"{op} v{r}, v{r}, v{t}")

def unpack(A, dlo, dhi, src):
    A(f"v_lshlrev_b32 v{dlo}, 16, v{src}\nv_and_b32 v{dhi}, 0xffff0000, v{src}")

PROF = {"on": False}
WS_PROF = 0xE00000 + 0x180000
S_ST = 64
def stamp(A, i):
    if PROF["on"]:
        A(f"s_memrealtime s[{S_ST+2*i}:{S_ST+2*i+1}]")
        A(f"s_memtime s[{S_ST+2*i+12}:{S_ST+2*i+13}]")
def prof_begin(A):
    if PROF["on"]:
        for i in range(1, 14): A(f"s_mov_b32 s{S_ST+2*i}, 0")
        A(f"s_mov_b32 s96, s2\ns_memrealtime s[{S_ST}:{S_ST+1}]\ns_memtime s[{S_ST+28}:{S_ST+29}]")
def prof_end(A, kidx, sWS, sw, vt):
    if PROF["on"]:
        A(f"""s_waitcnt vmcnt(0)
              s_memrealtime s[{S_ST+26}:{S_ST+27}]
              s_memtime s[{S_ST+30}:{S_ST+31}]
              s_lshl_b32 s96, s96, 2
              s_add_u32 s96, s96, s{sw}
              s_lshl_b32 s96, s96, 6
              s_add_u32 s96, s96, {0x1000000 + kidx*0x40000}
              s_mov_b32 s{sWS+2}, 0x2000000
              s_mov_b64 exec, 1
              v_mov_b32 v{vt}, 0
              s_waitcnt lgkmcnt(0)""")
        for i in range(16):
            A(f"v_mov_b32 v{vt+1}, s{S_ST+2*i}\nbuffer_store_dword v{vt+1}, v{vt}, s[{sWS}:{sWS+3}], s96 offen offset:{4*i}")

WS_ST  = 0xA00000
WS_CR  = 0xA40000
WS_CK  = 0xA70000
WS_AC  = 0xA71000
WS_CLR_END = 0xA77000
SPIN = 1 << 16
WS_RS  = 0xA78000
WS_FL  = 0xA80000
```

```python
from asmlib import *
import struct, math
NAME = "sequential_preLN__mha_block__moe_arch_mod__prompt"
KA_X, KA_WQKV, KA_WO, KA_BX, KA_WR, KA_WG, KA_WU, KA_WD, KA_OUT, KA_DBG, KA_WS = [8*i for i in range(11)]
WS_QK = 0
WS_V  = 0x500000
WS_OM = 0x780000
WS_OT = 0x980000
WS_ST = 0xA00000
WS_CR = 0xA40000
WS_CK = 0xA70000
WS_AC = 0xA71000
WS_RS = 0xA80000
WS_FL = 0xA88000
WS_SIZE = 0x1000000
QSCALE = math.log2(math.e) / math.sqrt(20.0)
SPIN = 1 << 16
def f32(x):
    return "0x%08x" % struct.unpack("<I", struct.pack("<f", x))[0]
def srd(A, b, nbytes):
    A(f"s_mov_b32 s{b+2}, {nbytes}\ns_mov_b32 s{b+3}, 0x20000")
def swap23(A, dst, src, t0, t1):
    A(f"""v_lshrrev_b32 v{t0}, 1, v{src}
          v_xor_b32 v{t0}, v{t0}, v{src}
          v_and_b32 v{t0}, 4, v{t0}
          v_mul_u32_u24 v{t1}, 3, v{t0}
          v_xor_b32 v{dst}, v{t1}, v{src}""")
def allreduce16(A, op, regs):
    for ror in (8, 4, 2, 1):
        if len(regs) < 3: A(f"s_nop {2-len(regs)}")
        for r in regs:
            A(f"{op}_dpp v{r}, v{r}, v{r} row_ror:{ror} row_mask:0xf bank_mask:0xf")
def allreduce_x(A, op, regs, tmps, which):
    for r, t in zip(regs, tmps):
        A(f"v_mov_b32 v{t}, v{r}")
    if len(regs) < 3: A(f"s_nop {2-len(regs)}")
    for r, t in zip(regs, tmps):
        A(f"v_permlane{which}_swap_b32 v{r}, v{t}")
    for r, t in zip(regs, tmps):
        A(f"{op} v{r}, v{r}, v{t}")
def unpack(A, dlo, dhi, src):
    A(f"v_lshlrev_b32 v{dlo}, 16, v{src}\nv_and_b32 v{dhi}, 0xffff0000, v{src}")

PROF = {"on": False, "cyc": False}
S_ST = 64
NST = 18
def stamp(A, i):
    if PROF["on"]:
        A(f"{'s_memtime' if PROF['cyc'] else 's_memrealtime'} s[{S_ST+2*i}:{S_ST+2*i+1}]")
def prof_begin(A):
    if PROF["on"]:
        for i in range(1, NST): A(f"s_mov_b32 s{S_ST+2*i}, 0")
        stamp(A, 0)
def prof_end(A, sWS, sw, vt):
    if PROF["on"]:
        A("s_waitcnt vmcnt(0)")
        stamp(A, NST-1)
        A(f"""s_lshl_b32 s3, s2, 2
              s_add_u32 s3, s3, s{sw}
              s_lshl_b32 s3, s3, 7
              s_add_u32 s3, s3, 0x1000000
              s_mov_b32 s{sWS+2}, 0x2000000
              s_mov_b64 exec, 1
              v_mov_b32 v{vt}, 0
              s_waitcnt lgkmcnt(0)""")
        for i in range(NST):
            A(f"v_mov_b32 v{vt+1}, s{S_ST+2*i}\nbuffer_store_dword v{vt+1}, v{vt}, s[{sWS}:{sWS+3}], s3 offen offset:{4*i}")
```

```python
from fcommon import *

OPT = dict(probe=None, probe_wg=0, probe_wave=0)
NSLOT = 4
STAT = NSLOT * 32768
L_EF = 102400
L_WAVE = 15360
LDS_TOTAL = 163840
RING = 56
A_EF = 188
A_X, A_WR = 236, 246

sX, sW, sWS, sDB, sOUT, sP1, sP2, sWR, sWO = 4, 8, 12, 16, 20, 24, 28, 32, 36
sw, sNON, sROLE, sIDX, sT0, sT1, sT2, sCNT = range(40, 48)
W_ = f"s[{sWS}:{sWS+3}]"

def R(b): return f"s[{b}:{b+3}]"

def spin(A, loads, check, name, first_issued=False):
    lp = A.uid(name); ck = A.uid(name + "_ck"); ok = A.uid(name + "_ok")
    A(f"s_mov_b32 s{sCNT}, {SPIN}")
    if first_issued: A(f"s_branch {ck}")
    A.label(lp)
    for x in loads: A(x)
    if first_issued: A.label(ck)
    A(f"s_sub_u32 s{sCNT}, s{sCNT}, 1\ns_waitcnt vmcnt(0)\ns_cbranch_scc1 {ok}")
    check()
    A(f"s_cbranch_vccnz {lp}")
    A.label(ok)

def sentinel_check(A, regs, tmp):
    rs = list(regs)
    if len(rs) == 1:
        A(f"v_cmp_eq_u32 vcc, -1, v{rs[0]}"); return
    A(f"v_max_u32 v{tmp}, v{rs[0]}, v{rs[1]}")
    i = 2
    while i + 1 < len(rs):
        A(f"v_max3_u32 v{tmp}, v{tmp}, v{rs[i]}, v{rs[i+1]}"); i += 2
    if i < len(rs): A(f"v_max_u32 v{tmp}, v{tmp}, v{rs[i]}")
    A(f"v_cmp_eq_u32 vcc, -1, v{tmp}")

def late_setup(A):
    A(f"""s_load_dwordx2 s[{sOUT}:{sOUT+1}], s[0:1], {KA_OUT}
          s_load_dwordx2 s[{sWR}:{sWR+1}], s[0:1], {KA_WR}
          s_load_dwordx2 s[{sWO}:{sWO+1}], s[0:1], {KA_WO}
          s_and_b32 s{sT1}, s2, 7
          s_lshr_b32 s{sT0}, s2, 3
          s_mul_i32 s{sIDX}, s{sT1}, 12
          s_add_u32 s{sIDX}, s{sIDX}, s{sT0}
          s_mul_i32 s{sT2}, s{sT1}, 5
          s_add_u32 s{sT2}, s{sT2}, s{sT0}
          s_sub_u32 s{sT2}, s{sT2}, 12
          s_cmp_lt_u32 s{sT0}, 17
          s_cselect_b32 s{sROLE}, 1, 2
          s_cmp_lt_u32 s{sT0}, 12
          s_cselect_b32 s{sROLE}, 0, s{sROLE}
          s_cselect_b32 s{sIDX}, s{sIDX}, s{sT2}
          s_cselect_b32 s{sT0}, {KA_WG}, {KA_WD}
          s_cselect_b32 s{sT1}, {KA_WU}, {KA_WD}
          s_load_dwordx2 s[{sP1}:{sP1+1}], s[0:1], s{sT0}
          s_load_dwordx2 s[{sP2}:{sP2+1}], s[0:1], s{sT1}""")
    srd(A, sOUT, 2621440); srd(A, sP1, 640*3072); srd(A, sP2, 640*3072); srd(A, sWR, 1280); srd(A, sWO, 819200)

def phase_A(A, label, lane, vz):
    srb, scb, stw, scw, sMX, sOX, sOW, sIT, sSL, sSC, sSD = range(48, 59)
    V = Alloc(3, 256)
    t0 = V(); t1 = V(); t2 = V(); t3 = V(); rho = V(); prm = V(); hb = V()
    vXD = V(4); vWD = V(4)
    bX = V(); bW = V()
    aX = V(4); aW = V(4)
    sel = V(4, 4); sidx = V(); non = V(); aRS = V(); aCL = V()
    cs = V(4, 4); rs = V(4, 4); ones = V(4, 4)
    F = [V(16, 4), V(16, 4)]
    acc = [[V(16, 4) for C in range(2)] for T in range(2)]
    ep = V(64, 4)
    pr = V(4, 2)
    edge = label + "_edge"
    A(f"""s_lshr_b32 s{sT0}, s2, 3
          s_and_b32 s{srb}, s2, 3
          s_lshl_b32 s{srb}, s{srb}, 2
          s_and_b32 s{sT1}, s{sT0}, 3
          s_add_u32 s{srb}, s{srb}, s{sT1}
          s_and_b32 s{scb}, s2, 4
          s_lshl_b32 s{scb}, s{scb}, 1
          s_lshr_b32 s{sT1}, s{sT0}, 2
          s_add_u32 s{scb}, s{scb}, s{sT1}
          s_and_b32 s{stw}, s{sw}, 1
          s_lshr_b32 s{scw}, s{sw}, 1
          s_lshl_b32 s{sT0}, s{srb}, 7
          s_lshl_b32 s{sT1}, s{sw}, 5
          s_add_u32 s{sSD}, s{sT0}, s{sT1}
          s_mul_i32 s{sT0}, s{sSD}, 1280
          s_cmp_ge_u32 s{scb}, 15
          s_cbranch_scc1 {label}_S
          v_lshrrev_b32 v{t0}, 3, v{lane}
          v_mul_u32_u24 v{t0}, 1280, v{t0}
          v_add_u32 v{t0}, s{sT0}, v{t0}
          v_lshrrev_b32 v{t1}, 4, v{lane}
          v_and_b32 v{t2}, 7, v{lane}
          v_xor_b32 v{t2}, v{t2}, v{t1}
          v_lshlrev_b32 v{t2}, 4, v{t2}
          v_add_u32 v{vXD}, v{t0}, v{t2}
          v_xor_b32 v{t2}, 64, v{t2}
          v_add_u32 v{vXD+1}, v{t0}, v{t2}
          v_add_u32 v{vXD+1}, {10240-1024}, v{vXD+1}
          v_add_u32 v{vXD+2}, {2*(10240-1024)}, v{vXD}
          v_add_u32 v{vXD+3}, {2*(10240-1024)}, v{vXD+1}
          s_mul_i32 s{sT0}, s{sw}, {16*3840}
          s_lshl_b32 s{sT1}, s{scb}, 8
          s_add_u32 s{sT0}, s{sT0}, s{sT1}
          v_mul_u32_u24 v{t0}, 3840, v{t1}
          v_add_u32 v{t0}, s{sT0}, v{t0}
          v_bfe_u32 v{t2}, v{lane}, 2, 2
          v_xor_b32 v{t2}, v{t2}, v{t1}
          v_lshlrev_b32 v{t2}, 6, v{t2}
          v_and_b32 v{t3}, 3, v{lane}
          v_lshl_add_u32 v{t2}, v{t3}, 4, v{t2}
          v_add_u32 v{vWD}, v{t0}, v{t2}
          v_add_u32 v{vWD+1}, {4*3840-1024}, v{vWD}
          v_add_u32 v{vWD+2}, {2*(4*3840-1024)}, v{vWD}
          v_add_u32 v{vWD+3}, {3*(4*3840-1024)}, v{vWD}
          s_lshl_b32 s{sMX}, s{sw}, 12
          s_mov_b32 s{sOX}, 0
          s_mov_b32 s{sOW}, 0
          s_waitcnt lgkmcnt(0)""")
    stamp(A, 1)
    def dx(i): return f"buffer_load_dwordx4 v{vXD+i}, {R(sX)}, s{sOX} offen offset:{1024*i} lds"
    def dw(i): return f"buffer_load_dwordx4 v{vWD+i}, {R(sW)}, s{sOW} offen offset:{1024*i} lds"
    for st in range(NSLOT):
        A(f"s_add_u32 m0, s{sMX}, {st*32768}\ns_nop 0")
        for i in range(4 if st < NSLOT-1 else 2): A(dx(i))
        if st < NSLOT-1:
            A(f"s_add_u32 m0, m0, 16384\ns_add_u32 s{sOX}, s{sOX}, 128")
            for i in range(4): A(dw(i))
            A(f"s_add_u32 s{sOW}, s{sOW}, {64*3840}")
    def clear_setup():
        late_setup(A)
        A(f"""s_mul_i32 s{sT2}, s2, 12288
              s_mul_i32 s{sT1}, s{sw}, 3072
              s_add_u32 s{sT2}, s{sT2}, s{sT1}
              s_add_u32 s{sT2}, s{sT2}, {WS_OM}
              v_lshlrev_b32 v{aCL}, 4, v{lane}
              v_add_u32 v{aCL}, s{sT2}, v{aCL}""")
        for r in range(4): A(f"v_mov_b32 v{ones+r}, -1")
    clears = [f"buffer_store_dwordx4 {v(ones,4)}, v{aCL}, {W_}, 0 offen offset:{1024*i} sc1" for i in range(3)]
    clear_setup()
    A(f"""s_mov_b32 s{sSL}, 0
          s_mov_b32 s{sIT}, 0
          s_mov_b32 s{sSC}, 1.0
          s_cmp_lt_u32 s{scb}, 5
          s_cselect_b32 s{sSC}, {f32(QSCALE)}, s{sSC}
          v_and_b32 v{rho}, 31, v{lane}
          v_lshrrev_b32 v{hb}, 5, v{lane}
          v_add_u32 v{aRS}, s{sSD}, v{rho}
          v_lshlrev_b32 v{aRS}, 4, v{aRS}
          v_add_u32 v{aRS}, {WS_RS}, v{aRS}""")
    swap23(A, prm, rho, t0, t1)
    A(f"""v_bfe_u32 v{t0}, v{lane}, 3, 1
          v_xor_b32 v{t0}, v{t0}, v{hb}
          v_bfe_u32 v{t1}, v{lane}, 1, 1
          v_or_b32 v{t0}, v{t0}, v{t1}
          v_bfe_u32 v{t1}, v{lane}, 2, 1
          v_lshl_or_b32 v{t0}, v{t0}, 1, v{t1}
          v_mov_b32 v{t1}, 0x3f803f80
          v_cmp_eq_u32 vcc, 0, v{t0}
          v_and_b32 v{t2}, 1, v{lane}
          v_mul_u32_u24 v{t2}, 0xaaaa, v{t2}
          v_cndmask_b32 v{sel}, v{vz}, v{t1}, vcc
          v_cndmask_b32 v{sel+1}, v{vz}, v{t1}, vcc
          v_cmp_eq_u32 vcc, 1, v{t0}
          v_add_u32 v{sidx}, 0x4444, v{t2}
          s_nop 0
          v_cndmask_b32 v{sel+2}, v{vz}, v{t1}, vcc
          v_cndmask_b32 v{sel+3}, v{vz}, v{t1}, vcc""")
    for T in range(2):
        for C in range(2):
            for r in range(16):
                A(f"v_mov_b32 v{acc[T][C]+r}, 0")
    for r in range(4): A(f"v_mov_b32 v{cs+r}, 0")
    A(f"s_cmp_ge_u32 s{scb}, 10\ns_cbranch_scc1 {label}_V")

    def variant(isV):
        xr = prm if isV else rho
        A(f"""s_lshl_b32 s{sT0}, s{stw}, 13
              s_lshl_b32 s{sT1}, s{stw}, 1
              v_bfe_u32 v{t0}, v{xr}, 1, 3
              v_xor_b32 v{t0}, v{t0}, v{hb}
              v_xor_b32 v{t0}, s{sT1}, v{t0}
              v_lshlrev_b32 v{t0}, 4, v{t0}
              v_lshl_add_u32 v{t0}, v{xr}, 7, v{t0}
              v_add_u32 v{bX}, s{sT0}, v{t0}
              s_lshl_b32 s{sT0}, s{scw}, 1
              v_bfe_u32 v{t0}, v{lane}, 2, 2
              v_xor_b32 v{t1}, s{sT0}, v{t0}
              v_lshlrev_b32 v{t1}, 6, v{t1}
              v_lshl_add_u32 v{t0}, v{hb}, 3, v{t0}
              v_lshl_add_u32 v{t1}, v{t0}, 8, v{t1}
              v_bfe_u32 v{t0}, v{lane}, 4, 1
              v_lshl_add_u32 v{t1}, v{t0}, 5, v{t1}
              v_and_b32 v{t0}, 3, v{lane}""")
        if not isV:
            A(f"""v_lshrrev_b32 v{t2}, 1, v{t0}
                  v_and_b32 v{t0}, 1, v{t0}
                  v_lshl_add_u32 v{t0}, v{t0}, 1, v{t2}""")
        A(f"""v_lshl_add_u32 v{t1}, v{t0}, 3, v{t1}
              s_lshl_b32 s{sT0}, s{stw}, 12
              s_add_u32 s{sT0}, s{sT0}, 16384
              v_add_u32 v{bW}, s{sT0}, v{t1}""")
        def addr_update(sreg):
            L = [f"v_add_u32 v{aX}, s{sreg}, v{bX}", f"v_add_u32 v{aW}, s{sreg}, v{bW}", f"v_xor_b32 v{aW+2}, 64, v{aW}"]
            L += [f"v_xor_b32 v{aX+ks}, {32*ks}, v{aX}" for ks in range(1, 4)]
            L += [f"v_xor_b32 v{aW+1}, 4096, v{aW}", f"v_xor_b32 v{aW+3}, 4096, v{aW+2}"]
            return L
        def reads(ks, f):
            L = []
            for i in range(2):
                L.append(f"ds_read_b128 {v(f+4*i,4)}, v{aX+ks} offset:{4096*i}")
                L.append(f"ds_read_b64_tr_b16 {v(f+8+4*i,2)}, v{aW+2*i+(ks&1)} offset:{(ks>>1)*8192}")
                L.append(f"ds_read_b64_tr_b16 {v(f+10+4*i,2)}, v{aW+2*i+(ks&1)} offset:{(ks>>1)*8192 + 1024}")
            return L
        def mfma(T, C, f):
            x_, w_ = v(f+4*T, 4), v(f+8+4*C, 4)
            p, q = (x_, w_) if isV else (w_, x_)
            return f"v_mfma_f32_32x32x16_bf16 {v(acc[T][C],16)}, {p}, {q}, {v(acc[T][C],16)}"
        def stage(rest, nxt, vm, last=False, extra=None, loop=None):
            for ks in range(4):
                f = F[ks & 1]; fn = F[(ks+1) & 1]
                M = [mfma(0,0,f), mfma(1,0,f), mfma(0,1,f), mfma(1,1,f)]
                fill = [[], [], [], []]
                if ks < 3:
                    A("s_waitcnt lgkmcnt(0)")
                    Rd = reads(ks+1, fn)
                    fill[0] = Rd[:3]; fill[1] = Rd[3:]
                    if rest:
                        if ks == 0: fill[2] = [dx(2)]; fill[3] = [dx(3), f"s_add_u32 m0, m0, 16384", f"s_add_u32 s{sOX}, s{sOX}, 128"]
                        if ks == 1: fill[2] = [dw(0)]; fill[3] = [dw(1)]
                        if ks == 2: fill[2] = [dw(2)]; fill[3] = [dw(3), f"s_add_u32 s{sOW}, s{sOW}, {64*3840}"]
                    if ks == 1 and not last:
                        fill[2] += [f"s_add_u32 s{sT0}, s{sSL}, 32768", f"s_and_b32 s{sT0}, s{sT0}, {NSLOT*32768-1}"]
                    if ks == 2 and not last:
                        U = addr_update(sT0)
                        fill[2] += U[:4]; fill[3] += U[4:]
                    if extra and ks < len(extra): fill[3] = [extra[ks]] + fill[3]
                else:
                    if last:
                        A("s_waitcnt lgkmcnt(0)")
                    else:
                        A(f"s_waitcnt vmcnt({vm}) lgkmcnt(0)\ns_barrier")
                        Rd = reads(0, fn)
                        fill[0] = Rd[:3]; fill[1] = Rd[3:]
                        if nxt:
                            fill[1] += [f"s_add_u32 m0, s{sMX}, s{sSL}"]
                            fill[2] = [dx(0)]; fill[3] = [dx(1)]
                        fill[2] += [f"s_mov_b32 s{sSL}, s{sT0}"]
                        if loop:
                            fill[2] += [f"s_add_u32 s{sIT}, s{sIT}, 1", f"s_cmp_lt_u32 s{sIT}, {10-NSLOT}"]
                for i in range(4):
                    A(M[i])
                    for x in fill[i]: A(x)
                if ks in (0, 2):
                    A(f"v_smfmac_f32_16x16x64_bf16 {v(cs,4)}, {v(sel,4)}, {v(f+8,8)}, v{sidx}")
            if loop: A(f"s_cbranch_scc1 {loop}")
        for x in addr_update(sSL): A(x)
        A(f"s_waitcnt vmcnt(18)\ns_barrier")
        stamp(A, 2)
        for x in reads(0, F[0]): A(x)
        loop = f"{label}_Aloop{int(isV)}"
        A(".p2align 3")
        A.label(loop)
        stage(True, True, 16, loop=loop)
        ldst = [f"buffer_load_dwordx4 {v(rs,4)}, v{aRS}, {W_}, 0 offen sc1", f"buffer_load_dword v{non}, v{vz}, {R(sDB)}, 0 offen sc1"]
        stage(True, False, 16)
        stage(False, False, 8+3, extra=clears)
        stage(False, False, 3+2, extra=ldst)
        stage(False, False, 0, last=True)
        stamp(A, 3)
        def chk():
            A(f"""v_xor_b32 v{t0}, v{rs+2}, v{non}
                  v_xor_b32 v{t1}, v{rs+3}, v{non}
                  v_and_b32 v{t2}, 1, v{non}
                  v_xor_b32 v{t2}, 1, v{t2}
                  v_or3_b32 v{t0}, v{t0}, v{t1}, v{t2}
                  v_cmp_ne_u32 vcc, 0, v{t0}""")
        spin(A, ldst, chk, "A_rs", first_issued=True)
        wr = rho if isV else prm
        A(f"""v_readfirstlane_b32 s{sNON}, v{non}
              s_lshl_b32 s{sT0}, s{sw}, 7
              s_add_u32 s{sT0}, s{sT0}, {STAT}
              v_mul_f32 v{t0}, s{sSC}, v{rs}
              v_mul_f32 v{t1}, s{sSC}, v{rs+1}
              v_lshl_add_u32 v{t2}, v{rho}, 2, s{sT0}
              ds_write_b32 v{t2}, v{t0}
              ds_write_b32 v{t2}, v{t1} offset:512
              s_lshl_b32 s{sOX}, s{scw}, 8
              s_add_u32 s{sOX}, s{sOX}, {STAT+1024}
              s_lshl_b32 s{sT1}, s{stw}, 9
              s_add_u32 s{sT1}, s{sT1}, s{sOX}
              v_lshl_add_u32 v{t3}, v{hb}, 5, v{wr}
              v_lshl_add_u32 v{t3}, v{t3}, 2, s{sT1}
              v_add_f32 v{cs}, v{cs}, v{cs+1}
              ds_write_b32 v{t3}, v{cs}
              s_lshl_b32 s{sT0}, s{stw}, 8
              s_add_u32 s{sT0}, s{sT0}, {STAT}
              s_waitcnt lgkmcnt(0)
              s_barrier""")
        if not isV:
            A(f"""v_lshl_add_u32 v{t0}, v{rho}, 2, s{sT0}
                  ds_read_b32 v{pr}, v{t0}
                  ds_read_b32 v{pr+1}, v{t0} offset:512
                  ds_read_b32 v{pr+2}, v{t0} offset:128
                  ds_read_b32 v{pr+3}, v{t0} offset:640
                  v_lshl_add_u32 v{t0}, v{hb}, 5, s{sOX}""")
            for C in range(2):
                for q in range(4):
                    for z in range(2):
                        A(f"ds_read_b128 {v(ep+32*z+16*C+4*q,4)}, v{t0} offset:{512*z + 128*C + (q>>1)*64 + (q&1)*16}")
            A(f"""s_lshl_b32 s{sT0}, s{scb}, 4
                  s_lshl_b32 s{sT1}, s{scw}, 3
                  s_add_u32 s{sT0}, s{sT0}, s{sT1}
                  s_lshl_b32 s{sT0}, s{sT0}, 15
                  s_lshl_b32 s{sT1}, s{srb}, 11
                  s_add_u32 s{sT0}, s{sT0}, s{sT1}
                  s_lshl_b32 s{sT1}, s{stw}, 10
                  s_add_u32 s{sT0}, s{sT0}, s{sT1}
                  v_lshlrev_b32 v{t0}, 15, v{hb}
                  v_lshl_add_u32 v{t0}, v{rho}, 4, v{t0}
                  v_add_u32 v{aX}, s{sT0}, v{t0}
                  v_add_u32 v{aX+1}, {4<<15}, v{aX}
                  s_mov_b32 s{sT0}, {2<<15}
                  s_waitcnt lgkmcnt(0)""")
            for r in range(0, 32, 2):
                A(f"v_pk_add_f32 {v(ep+r,2)}, {v(ep+r,2)}, {v(ep+32+r,2)}")
            for T in range(2):
                for C in range(2):
                    b = acc[T][C]; p = v(pr+2*T, 2)
                    for r in range(0, 16, 2):
                        A(f"v_pk_mul_f32 {v(b+r,2)}, {v(b+r,2)}, {p} op_sel_hi:[1,0]")
                        A(f"v_pk_fma_f32 {v(b+r,2)}, {v(ep+16*C+r,2)}, {p}, {v(b+r,2)} op_sel:[0,1,0] neg_lo:[0,1,0] neg_hi:[0,1,0]")
                    for r in range(8):
                        A(f"v_cvt_pk_bf16_f32 v{b+r}, v{b+2*r}, v{b+2*r+1}")
                    A(f"buffer_store_dwordx4 {v(b,4)}, v{aX+C}, {W_}, 0 offen offset:{512*T} sc1")
                    A(f"buffer_store_dwordx4 {v(b+4,4)}, v{aX+C}, {W_}, s{sT0} offen offset:{512*T} sc1")
        else:
            A(f"""v_lshl_add_u32 v{t0}, v{rho}, 2, s{sOX}
                  ds_read_b32 v{pr}, v{t0}
                  ds_read_b32 v{pr+1}, v{t0} offset:512
                  ds_read_b32 v{pr+2}, v{t0} offset:128
                  ds_read_b32 v{pr+3}, v{t0} offset:640
                  v_lshl_add_u32 v{t0}, v{hb}, 5, s{sT0}""")
            for T in range(2):
                for q in range(4):
                    A(f"ds_read_b128 {v(ep+32*T+4*q,4)}, v{t0} offset:{128*T + (q>>1)*64 + (q&1)*16}")
                    A(f"ds_read_b128 {v(ep+32*T+16+4*q,4)}, v{t0} offset:{512 + 128*T + (q>>1)*64 + (q&1)*16}")
            A(f"""s_sub_u32 s{sT0}, s{scb}, 10
                  s_lshl_b32 s{sT0}, s{sT0}, 7
                  s_lshl_b32 s{sT1}, s{scw}, 6
                  s_add_u32 s{sT0}, s{sT0}, s{sT1}
                  v_add_u32 v{t0}, s{sT0}, v{rho}
                  v_add_u32 v{t1}, 32, v{t0}
                  s_mov_b32 s{sT1}, {81920 - 320}""")
            for C, tt in ((0, t0), (1, t1)):
                A(f"""v_mul_u32_u24 v{t2}, 3277, v{tt}
                      v_lshrrev_b32 v{t2}, 16, v{t2}
                      v_mul_u32_u24 v{t2}, s{sT1}, v{t2}
                      v_lshl_add_u32 v{aX+C}, v{tt}, 4, v{t2}""")
            A(f"""s_lshl_b32 s{sT0}, s{srb}, 4
                  s_lshl_b32 s{sT1}, s{stw}, 3
                  s_add_u32 s{sT0}, s{sT0}, s{sT1}
                  s_mul_i32 s{sT0}, s{sT0}, 320
                  s_add_u32 s{sT0}, s{sT0}, {WS_V}
                  v_mul_u32_u24 v{t2}, 320, v{hb}
                  v_add_u32 v{aX}, v{aX}, v{t2}
                  v_add_u32 v{aX+1}, v{aX+1}, v{t2}
                  s_waitcnt lgkmcnt(0)
                  v_add_f32 v{pr}, v{pr}, v{pr+1}
                  v_add_f32 v{pr+2}, v{pr+2}, v{pr+3}""")
            for T in range(2):
                for C in range(2):
                    b = acc[T][C]; p = v(pr+2*C, 2)
                    for r in range(0, 16, 2):
                        A(f"v_pk_mul_f32 {v(b+r,2)}, {v(b+r,2)}, {v(ep+32*T+r,2)}")
                        A(f"v_pk_fma_f32 {v(b+r,2)}, {v(ep+32*T+16+r,2)}, {p}, {v(b+r,2)} op_sel_hi:[1,0,1] neg_lo:[0,1,0] neg_hi:[0,1,0]")
                    for r in range(8):
                        A(f"v_cvt_pk_bf16_f32 v{b+r}, v{b+2*r}, v{b+2*r+1}")
                    A(f"buffer_store_dwordx4 {v(b,4)}, v{aX+C}, {W_}, s{sT0} offen offset:{1280*T} sc1")
                    A(f"buffer_store_dwordx4 {v(b+4,4)}, v{aX+C}, {W_}, s{sT0} offen offset:{1280*T+640} sc1")
        A(f"s_branch {edge}")
    variant(False)
    A.label(label + "_V")
    variant(True)
    A.label(label + "_S")
    D = F[0]
    assert D + 160 <= ep + 64
    S1 = vXD
    assert aW + 4 - vXD >= 16
    nn = A.uid("A_nononce")
    A(f"""v_lshrrev_b32 v{t1}, 4, v{lane}
          v_and_b32 v{t2}, 15, v{lane}
          v_mul_u32_u24 v{t0}, 1280, v{t1}
          v_lshl_add_u32 v{t0}, v{t2}, 4, v{t0}
          s_memrealtime s[60:61]
          s_waitcnt lgkmcnt(0)
          s_cmp_lg_u32 s{sSD}, 0
          s_cbranch_scc1 {nn}
          s_or_b32 s{sOX}, s60, 1
          v_mov_b32 v{non}, s{sOX}
          s_mov_b64 exec, 1
          buffer_store_dword v{non}, v{vz}, {R(sDB)}, 0 offen sc1
          s_mov_b64 exec, -1""")
    A.label(nn)
    stamp(A, 1)
    for gI in range(8):
        for i in range(5):
            A(f"buffer_load_dwordx4 {v(D+20*gI+4*i,4)}, v{t0}, {R(sX)}, s{sT0} offen offset:{256*i}")
        A(f"s_add_u32 s{sT0}, s{sT0}, {4*1280}")
    clear_setup()
    A(f"s_mov_b32 s{sT1}, 0x3f803f80")
    for r in range(16): A(f"v_mov_b32 v{S1+r}, 0")
    for gp in range(4):
        A(f"s_waitcnt vmcnt({40 - 10*(gp+1)})")
        if gp == 3: A(f"buffer_load_dword v{non}, v{vz}, {R(sDB)}, 0 offen sc1")
        for r in range(20):
            for z in range(2):
                gI = 2*gp + z
                A(f"v_dot2_f32_bf16 v{S1+2*gI}, v{D+20*gI+r}, s{sT1}, v{S1+2*gI}")
                A(f"v_dot2_f32_bf16 v{S1+2*gI+1}, v{D+20*gI+r}, v{D+20*gI+r}, v{S1+2*gI+1}")
    allreduce16(A, "v_add_f32", list(range(S1, S1+16)))
    for c in range(1, 8):
        A(f"""v_cmp_eq_u32 vcc, {c}, v{t2}
              s_nop 1
              v_cndmask_b32 v{S1}, v{S1}, v{S1+2*c}, vcc
              v_cndmask_b32 v{S1+1}, v{S1+1}, v{S1+2*c+1}, vcc""")
    A(f"""v_mul_f32 v{S1}, {f32(1/640)}, v{S1}
          v_mul_f32 v{t0}, v{S1}, v{S1}
          v_mov_b32 v{t3}, {f32(1/640)}
          v_fma_f32 v{t0}, v{S1+1}, v{t3}, -v{t0}
          v_max_f32 v{t0}, 0, v{t0}
          v_add_f32 v{t0}, {f32(1e-5)}, v{t0}
          v_rsq_f32 v{rs}, v{t0}
          v_lshl_add_u32 v{t0}, v{t2}, 2, v{t1}
          v_mul_f32 v{rs+1}, v{S1}, v{rs}
          v_add_u32 v{t0}, s{sSD}, v{t0}
          v_lshlrev_b32 v{t0}, 4, v{t0}
          v_add_u32 v{t0}, {WS_RS}, v{t0}""")
    spin(A, [f"buffer_load_dword v{non}, v{vz}, {R(sDB)}, 0 offen sc1"], lambda: A(f"v_cmp_eq_u32 vcc, 0, v{non}"), "A_non", first_issued=True)
    A(f"""v_readfirstlane_b32 s{sNON}, v{non}
          v_mov_b32 v{rs+2}, v{non}
          v_mov_b32 v{rs+3}, v{non}
          s_mov_b32 exec_lo, 0x00ff00ff
          s_mov_b32 exec_hi, 0x00ff00ff
          buffer_store_dwordx4 {v(rs,4)}, v{t0}, {W_}, 0 offen sc1
          s_mov_b64 exec, -1""")
    stamp(A, 3)
    for x in clears: A(x)
    A.label(edge)
    return srb, scb

def kernel(A, label):
    A(f".globl {label}\n.p2align 8\n.type {label},@function")
    A.label(label)
    done = label + "_done"
    lane, vz = 1, 2
    prof_begin(A)
    A(f"""s_load_dwordx2 s[{sX}:{sX+1}], s[0:1], {KA_X}
          s_load_dwordx2 s[{sW}:{sW+1}], s[0:1], {KA_WQKV}
          s_load_dwordx2 s[{sWS}:{sWS+1}], s[0:1], {KA_WS}
          s_load_dwordx2 s[{sDB}:{sDB+1}], s[0:1], {KA_DBG}
          s_cmp_ge_u32 s2, 256
          s_cbranch_scc1 {done}
          v_lshrrev_b32 v{vz}, 6, v0
          v_and_b32 v{lane}, 63, v0
          v_readfirstlane_b32 s{sw}, v{vz}
          v_mov_b32 v{vz}, 0
          """)
    srd(A, sX, 2621440); srd(A, sW, 2457600); srd(A, sWS, WS_SIZE); srd(A, sDB, 256)
    srbA, scbA = phase_A(A, label, lane, vz)
    stamp(A, 4)
    sFL = 59
    A(f"""s_lshl_b32 s{sFL}, s{scbA}, 4
          s_add_u32 s{sFL}, s{sFL}, s{srbA}
          s_lshl_b32 s{sFL}, s{sFL}, 7
          s_add_u32 s{sFL}, s{sFL}, {WS_FL}
          s_waitcnt lgkmcnt(0)""")
    sh, sqb, sqh, skh, sKO, sVO, sPA, sTP, sOWN, sK0, sLE = range(48, 59)
    sEO, sEN = 60, 61
    sVM = 62
    V = Alloc(3, 256)
    rho = V(); hb = V(); t0 = V(); t1 = V(); t2 = V(); idx = V()
    aKm = V(); aKt = V(); aV = V(2); aQm = V(); aQt = V(); fl = V(); aFL = V(); dE = V(2); aXH = V()
    Qm = [V(4, 4) for t in range(4)]
    Qt = [[V(2) for t in range(4)] for z in range(2)]
    S = [V(16, 4) for t in range(4)]
    Km = [[V(4, 4) for kb in range(2)] for st in range(2)]
    Vv = [[[V(4, 4) for f in range(2)] for kb in range(2)] for st in range(2)]
    Kt = [V(2) for st in range(2)]
    O = [V(16, 4) for t in range(4)]
    dW = V(5)
    A(f"""s_and_b32 s{sT0}, s2, 7
          s_lshl_b32 s{sh}, s{sT0}, 2
          s_lshr_b32 s{sT0}, s2, 6
          s_add_u32 s{sh}, s{sh}, s{sT0}
          s_bfe_u32 s{sqb}, s2, 0x30003
          s_mul_i32 s{sT0}, s{sw}, {160*1280}
          s_mul_i32 s{sT1}, s{sqb}, 160
          s_add_u32 s{sT0}, s{sT0}, s{sT1}""")
    for i in range(5):
        A(f"""v_add_u32 v{t0}, {64*i}, v{lane}
              v_mul_u32_u24 v{t1}, 6554, v{t0}
              v_lshrrev_b32 v{t1}, 16, v{t1}
              v_mul_u32_u24 v{t2}, {1280-160}, v{t1}
              v_lshl_add_u32 v{t2}, v{t0}, 4, v{t2}
              v_add_u32 v{dW+i}, s{sT0}, v{t2}""")
    A(f"s_mul_i32 s{sT2}, s{sw}, 25600")
    for gi in range(5):
        for i in range(5):
            A(f"""s_add_u32 m0, s{sT2}, {gi*5120 + i*1024}
                  s_mov_b32 s{sT0}, {gi*32*1280}
                  buffer_load_dwordx4 v{dW+i}, {R(sWO)}, s{sT0} offen lds""")
    nf = A.uid("E_noflag")
    A(f"""s_waitcnt vmcnt(25)
          s_barrier
          s_cmp_lg_u32 s{sw}, 0
          s_cbranch_scc1 {nf}
          v_mov_b32 v{t0}, s{sNON}
          s_mov_b64 exec, 1
          buffer_store_dword v{t0}, v{vz}, {W_}, s{sFL} offen sc1
          s_mov_b64 exec, -1""")
    A.label(nf)
    stamp(A, 5)
    A(f"""s_lshl_b32 s{sT0}, s{sh}, 6
          s_lshl_b32 s{sT2}, s{sw}, 4
          s_add_u32 s{sT0}, s{sT0}, s{sT2}
          v_and_b32 v{t0}, 15, v{lane}
          v_add_u32 v{t0}, s{sT0}, v{t0}
          v_mul_u32_u24 v{aXH}, 1280, v{t0}
          v_lshrrev_b32 v{t2}, 4, v{lane}
          v_mul_u32_u24 v{t2}, 40, v{t2}
          v_add_u32 v{t2}, s{sT1}, v{t2}
          v_add_u32 v{aXH}, v{aXH}, v{t2}
          buffer_load_dwordx4 {a(A_X,4)}, v{aXH}, {R(sX)}, 0 offen
          buffer_load_dwordx4 {a(A_X+4,4)}, v{aXH}, {R(sX)}, 0 offen offset:16
          buffer_load_dwordx2 {a(A_X+8,2)}, v{aXH}, {R(sX)}, 0 offen offset:32
          buffer_load_dwordx4 {a(A_WR,4)}, v{t2}, {R(sWR)}, 0 offen
          buffer_load_dwordx4 {a(A_WR+4,4)}, v{t2}, {R(sWR)}, 0 offen offset:16
          buffer_load_dwordx2 {a(A_WR+8,2)}, v{t2}, {R(sWR)}, 0 offen offset:32""")
    A(f"""s_and_b32 s{sqh}, s{sw}, 1
          s_lshr_b32 s{skh}, s{sw}, 1
          s_mul_i32 s{sPA}, s{sh}, 5
          s_add_u32 s{sPA}, s{sPA}, 1
          s_lshr_b32 s{sPA}, s{sPA}, 1
          s_lshl_b32 s{sPA}, s{sPA}, 15
          s_add_u32 s{sT0}, s{sPA}, {2<<15}
          s_sub_u32 s{sT1}, s{sPA}, {(1<<15) - 8}
          s_bitcmp1_b32 s{sh}, 0
          s_cselect_b32 s{sTP}, s{sT1}, s{sT0}
          v_and_b32 v{rho}, 31, v{lane}
          v_lshrrev_b32 v{hb}, 5, v{lane}
          s_lshl_b32 s{sT0}, s{sqb}, 12
          s_lshl_b32 s{sT1}, s{sqh}, 11
          s_add_u32 s{sT0}, s{sT0}, s{sT1}
          s_lshl_b32 s{sT1}, s{skh}, 10
          s_add_u32 s{sOWN}, s{sT0}, s{sT1}
          v_lshlrev_b32 v{t0}, 15, v{hb}
          v_lshl_add_u32 v{t0}, v{rho}, 4, v{t0}
          v_add_u32 v{aQm}, s{sPA}, v{t0}
          v_lshlrev_b32 v{t1}, 4, v{rho}
          v_add_u32 v{aQt}, s{sTP}, v{t1}
          s_lshl_b32 s{sT0}, s{skh}, 14
          s_add_u32 s{sT0}, s{sT0}, {80<<15}
          v_add_u32 v{aKm}, s{sT0}, v{aQm}
          s_add_u32 s{sT0}, s{sT0}, s{sTP}
          v_lshlrev_b32 v{t1}, 4, v{lane}
          v_add_u32 v{aKt}, s{sT0}, v{t1}
          s_mul_i32 s{sT0}, s{sh}, 81920
          s_mul_i32 s{sT1}, s{skh}, {128*320}
          s_add_u32 s{sT0}, s{sT0}, s{sT1}
          s_add_u32 s{sT0}, s{sT0}, {WS_V}
          v_and_b32 v{t0}, 28, v{rho}
          v_mov_b32 v{t1}, 0x42130
          v_lshrrev_b32 v{t0}, v{t0}, v{t1}
          v_and_b32 v{t0}, 7, v{t0}
          v_and_b32 v{t1}, 3, v{rho}
          v_lshl_add_u32 v{t0}, v{t0}, 2, v{t1}
          v_lshlrev_b32 v{t0}, 4, v{t0}
          v_mul_u32_u24 v{t1}, 320, v{hb}
          v_add3_u32 v{aV}, v{t0}, v{t1}, s{sT0}
          v_add_u32 v{aV+1}, 2560, v{aV}
          s_mov_b32 s{sVM}, 0xfffff
          s_mov_b32 s{sVM+1}, 0xfffff
          s_lshl_b32 s{sK0}, s{sqb}, 11
          s_mov_b32 s{sKO}, s{sK0}
          s_mul_i32 s{sVO}, s{sqb}, 5120
          v_mov_b32 v{idx}, 0xdddddddd
          v_cmp_eq_u32 vcc, 20, v{rho}
          v_mov_b32 v{t1}, 0x3f803f80
          s_mul_i32 s{sLE}, s{sw}, {L_WAVE}
          v_cndmask_b32 v{t0}, v{vz}, v{t1}, vcc
          s_add_u32 s{sLE}, s{sLE}, {L_EF}""")
    for st in range(2):
        for kb in range(2):
            for f in range(2):
                for r in range(4):
                    A(f"v_mov_b32 v{Vv[st][kb][f]+r}, v{t0}")
    for z in range(2):
        for t in range(4):
            A(f"v_mov_b32 v{Qt[z][t]}, 0\nv_mov_b32 v{Qt[z][t]+1}, 0")
    for t in range(4):
        for r in range(16):
            A(f"v_mov_b32 v{O[t]+r}, 0")
    for r in range(16):
        A(f"v_mov_b32 v{S[3]+r}, 0")
    lF = A.uid("E_setF"); lG = A.uid("E_setdone")
    A(f"""v_lshrrev_b32 v{t0}, 1, v{lane}
          v_and_b32 v{t1}, 1, v{lane}
          v_lshlrev_b32 v{t1}, 4, v{t1}
          s_lshl_b32 s{sT1}, s{sIDX}, 5
          s_mov_b32 s{sEO}, 0
          s_mov_b32 m0, s{sLE}
          s_cmp_lg_u32 s{sROLE}, 0
          s_cbranch_scc1 {lF}
          v_mul_u32_u24 v{t2}, 64, v{hb}
          v_add_u32 v{t0}, v{t0}, v{t2}
          v_mul_u32_u24 v{t0}, 3072, v{t0}
          s_mul_i32 s{sT0}, s{sw}, {160*3072}
          s_add_u32 s{sT0}, s{sT0}, s{sT1}
          v_add3_u32 v{dE}, v{t0}, v{t1}, s{sT0}
          v_mov_b32 v{dE+1}, v{dE}
          s_mov_b32 s{sT2}, {16*3072}
          s_mov_b32 s{sEN}, {5*16*3072}
          s_branch {lG}""")
    A.label(lF)
    A(f"""v_mul_u32_u24 v{t0}, 1280, v{t0}
          s_mul_i32 s{sT0}, s{sw}, {384*1280}
          s_add_u32 s{sT0}, s{sT0}, s{sT1}
          v_add3_u32 v{dE}, v{t0}, v{t1}, s{sT0}
          v_add_u32 v{dE+1}, {32*1280}, v{dE}
          s_mov_b32 s{sT2}, {64*1280}
          s_cmp_eq_u32 s{sROLE}, 1
          s_cselect_b32 s{sEN}, {6*64*1280}, 0""")
    A.label(lG)
    sES = sPA
    A(f"""s_mov_b32 s{sES}, s{sT2}
          v_lshrrev_b32 v{t0}, 4, v{lane}
          v_min_u32 v{t0}, 2, v{t0}
          v_mul_u32_u24 v{t1}, 640, v{t0}
          v_bfe_u32 v{t2}, v{lane}, 3, 1
          v_mad_u32_u24 v{t1}, v{t2}, 19, v{t1}
          s_mul_i32 s{sT0}, s{sh}, 20
          v_add_u32 v{t1}, s{sT0}, v{t1}
          v_lshrrev_b32 v{t1}, 7, v{t1}
          v_and_b32 v{t2}, 7, v{lane}
          s_lshl_b32 s{sT0}, s{skh}, 3
          v_add_u32 v{t2}, s{sT0}, v{t2}
          s_lshl_b32 s{sT0}, s{sqb}, 1
          s_add_u32 s{sT0}, s{sT0}, s{sqh}
          v_cmp_eq_u32 vcc, 0, v{t0}
          v_mov_b32 v{t0}, s{sT0}
          s_lshl_b32 s{sT0}, s{sw}, 13
          v_cndmask_b32 v{t2}, v{t2}, v{t0}, vcc
          v_lshl_add_u32 v{t1}, v{t1}, 4, v{t2}
          v_lshlrev_b32 v{t1}, 7, v{t1}
          v_add_u32 v{t1}, {WS_FL}, v{t1}
          s_add_u32 s{sT0}, s{sT0}, {WS_FL}
          v_lshlrev_b32 v{aFL}, 7, v{lane}
          v_add_u32 v{aFL}, s{sT0}, v{aFL}""")
    spin(A, [f"buffer_load_dword v{fl}, v{t1}, {W_}, 0 offen sc1"], lambda: A(f"v_cmp_ne_u32 vcc, s{sNON}, v{fl}"), "E_fl")
    stamp(A, 6)
    def kv_loads(st, second):
        ko = 1024 if second else 0
        L = [f"buffer_load_dwordx4 {v(Km[st][0],4)}, v{aKm}, {W_}, s{sKO} offen offset:{ko} sc1",
             f"buffer_load_dwordx2 {v(Kt[st],2)}, v{aKt}, {W_}, s{sKO} offen offset:{ko} sc1",
             f"buffer_load_dwordx4 {v(Km[st][1],4)}, v{aKm}, {W_}, s{sKO} offen offset:{ko+512} sc1",
             f"s_mov_b64 exec, s[{sVM}:{sVM+1}]"]
        for kb in range(2):
            for f in range(2):
                L.append(f"buffer_load_dwordx4 {v(Vv[st][kb][f],4)}, v{aV+(1 if second else 0)}, {W_}, s{sVO} offen offset:{(4*kb+2*f)*320} sc1")
        L.append("s_mov_b64 exec, -1")
        return L
    A(f"s_xor_b32 s{sT2}, s{sOWN}, 1024")
    for t in range(4):
        so = sT2 if t < 2 else sOWN
        A(f"buffer_load_dwordx4 {v(Qm[t],4)}, v{aQm}, {W_}, s{so} offen offset:{512*(t&1)} sc1")
    for z in range(2):
        A(f"s_mov_b32 exec_lo, {-1 if z == 0 else 0}\ns_mov_b32 exec_hi, {0 if z == 0 else -1}")
        for t in range(4):
            so = sT2 if t < 2 else sOWN
            A(f"buffer_load_dwordx2 {v(Qt[z][t],2)}, v{aQt}, {W_}, s{so} offen offset:{512*(t&1)} sc1")
    A("s_mov_b64 exec, -1")
    for x in kv_loads(0, False): A(x)
    ld_allfl = f"buffer_load_dword v{fl}, v{aFL}, {W_}, 0 offen sc1"
    A(ld_allfl)
    def qk(st, kb, t):
        return (f"v_mfma_f32_32x32x16_bf16 {v(S[t],16)}, {v(Km[st][kb],4)}, {v(Qm[t],4)}, 0",
                f"v_mfma_f32_32x32x8_bf16 {v(S[t],16)}, {v(Kt[st],2)}, {v(Qt[kb][t],2)}, {v(S[t],16)}")
    def pv(st, kb, t):
        return tuple(f"v_smfmac_f32_32x32x32_bf16 {v(O[t],16)}, {v(Vv[st][kb][f],4)}, {v(S[t]+8*f,8)}, v{idx}" for f in range(2))
    A("s_waitcnt vmcnt(1)")
    stamp(A, 7)
    q = qk(0, 0, 0)
    A(q[0]); A(q[1]); A("s_nop 10")
    loop = label + "_Bloop"
    A(".p2align 3")
    A.label(loop)
    for n in range(16):
        st, kb, t = n >> 3, (n >> 2) & 1, n & 3
        nn = (n + 1) & 15; pn = (n - 1) & 15
        q = qk(nn >> 3, (nn >> 2) & 1, nn & 3)
        p = pv(pn >> 3, (pn >> 2) & 1, pn & 3)
        E = [f"v_exp_f32 v{S[t]+r}, v{S[t]+r}" for r in range(16)]
        if n & 7 == 7:
            A("s_waitcnt vmcnt(0)")
        A(q[0])
        if n == 1:
            for x in kv_loads(1, True): A(x)
            A(f"""s_add_u32 s{sKO}, s{sKO}, 2048
                  s_and_b32 s{sKO}, s{sKO}, 16383
                  s_lshr_b32 s{sVO}, s{sKO}, 1
                  s_mul_i32 s{sVO}, s{sVO}, 5""")
        if n == 7:
            sk = A.uid("B_noef")
            A(f"""s_cmp_ge_u32 s{sEO}, s{sEN}
                  s_cbranch_scc1 {sk}
                  buffer_load_dwordx4 v{dE}, {R(sP1)}, s{sEO} offen lds
                  s_add_u32 m0, m0, 1024
                  s_nop 0
                  buffer_load_dwordx4 v{dE+1}, {R(sP2)}, s{sEO} offen lds
                  s_add_u32 m0, m0, 1024
                  s_add_u32 s{sEO}, s{sEO}, s{sES}""")
            A.label(sk)
        if n == 9:
            for x in kv_loads(0, False): A(x)
            A(f"s_cmp_lg_u32 s{sKO}, s{sK0}")
        for x in E[0:4]: A(x)
        A(q[1])
        for x in E[4:8]: A(x)
        A(p[0])
        for x in E[8:12]: A(x)
        A(p[1])
        for x in E[12:16]: A(x)
    A(f"s_cbranch_scc1 {loop}")
    stamp(A, 8)
    p = pv(1, 1, 3)
    A(p[0]); A(p[1])
    aEF = aQm
    A(f"""v_bfe_u32 v{t0}, v{lane}, 2, 2
          v_lshrrev_b32 v{t1}, 4, v{lane}
          v_lshl_add_u32 v{t0}, v{t1}, 3, v{t0}
          v_lshlrev_b32 v{t0}, 5, v{t0}
          v_and_b32 v{t1}, 3, v{lane}
          v_lshl_add_u32 v{t0}, v{t1}, 3, v{t0}
          v_add_u32 v{aEF}, s{sLE}, v{t0}""")
    def ef_read(j):
        return [f"ds_read_b64_tr_b16 {a(A_EF+4*j+2*t,2)}, v{aEF} offset:{1024*j + 128*t}" for t in range(2)]
    for j in (9, 10, 11):
        for x in ef_read(j): A(x)
    A(f"""s_xor_b32 s{sT2}, s{sw}, 2
          s_mul_i32 s{sT2}, s{sT2}, {L_WAVE}
          s_add_u32 s{sT2}, s{sT2}, {L_EF}
          v_lshlrev_b32 v{t0}, 4, v{lane}
          v_add_u32 v{t1}, s{sT2}, v{t0}
          v_add_u32 v{t0}, s{sLE}, v{t0}""")
    for t in range(2):
        for qd in range(3):
            A(f"ds_write_b128 v{t0}, {v(O[t]+4*qd,4)} offset:{9216 + (3*t+qd)*1024}")
    spin(A, [ld_allfl], lambda: A(f"v_cmp_ne_u32 vcc, s{sNON}, v{fl}"), "B_allfl", first_issued=True)
    A("s_waitcnt lgkmcnt(0)\ns_barrier")
    for t in range(2):
        for qd in range(3):
            A(f"ds_read_b128 {v(S[t]+4*qd,4)}, v{t1} offset:{9216 + (3*t+qd)*1024}")
    aOm, aOt = dE, dE+1
    A(f"""s_lshl_b32 s{sT0}, s{sh}, 16
          s_add_u32 s{sT0}, s{sT0}, s{sOWN}
          s_add_u32 s{sT0}, s{sT0}, {WS_OM}
          v_lshlrev_b32 v{t0}, 15, v{hb}
          v_lshl_add_u32 v{t0}, v{rho}, 4, v{t0}
          v_add_u32 v{aOm}, s{sT0}, v{t0}
          s_lshl_b32 s{sT0}, s{sh}, 14
          s_lshr_b32 s{sT2}, s{sOWN}, 1
          s_add_u32 s{sT0}, s{sT0}, s{sT2}
          s_add_u32 s{sT0}, s{sT0}, {WS_OT}
          v_lshlrev_b32 v{t0}, 3, v{lane}
          v_add_u32 v{aOt}, s{sT0}, v{t0}
          s_waitcnt lgkmcnt(0)""")
    for t in range(2):
        b = O[2+t]
        for r in range(0, 12, 2):
            A(f"v_pk_add_f32 {v(b+r,2)}, {v(b+r,2)}, {v(S[t]+r,2)}")
    lreg = [S[0], S[0]+2]
    slow = label + "_slow"; norm = label + "_norm"
    def rowsum():
        for t in range(2):
            b = O[2+t]; l = lreg[t]
            A(f"v_mov_b32 v{l}, v{b+8}\nv_mov_b32 v{l+1}, v{b+8}")
        A("s_nop 0")
        for t in range(2):
            l = lreg[t]
            A(f"v_permlane32_swap_b32 v{l+1}, v{l}")
    rowsum()
    A(f"""v_subrev_u32 v{t0}, {f32(2.0**-64)}, v{lreg[0]}
          v_subrev_u32 v{t1}, {f32(2.0**-64)}, v{lreg[1]}
          v_max_u32 v{t0}, v{t0}, v{t1}
          v_cmp_lt_u32 vcc, 0x40000000, v{t0}
          s_cbranch_vccnz {slow}""")
    A.label(norm)
    for t in range(2):
        l = lreg[t]
        A(f"v_rcp_f32 v{l+1}, v{l}")
    A("s_nop 0")
    for t in range(2):
        b = O[2+t]; l = lreg[t]
        for r in range(0, 12, 2):
            A(f"v_pk_mul_f32 {v(b+r,2)}, {v(b+r,2)}, {v(l,2)} op_sel:[0,1] op_sel_hi:[1,1]")
        for r in range(6):
            A(f"v_cvt_pk_bf16_f32 v{b+r}, v{b+2*r}, v{b+2*r+1}")
        for r in range(6):
            A(f"v_min_u32 v{b+r}, -2, v{b+r}")
        A(f"buffer_store_dwordx4 {v(b,4)}, v{aOm}, {W_}, 0 offen offset:{512*t} sc1")
    A(f"""s_nop 0
          v_permlane32_swap_b32 v{O[2]+4}, v{O[3]+4}
          v_permlane32_swap_b32 v{O[2]+5}, v{O[3]+5}
          buffer_store_dwordx2 {v(O[2]+4,2)}, v{aOt}, {W_}, 0 offen sc1
          s_barrier""")
    stamp(A, 9)
    slow_ctx = dict(slow=slow, norm=norm, rowsum=rowsum, kv_loads=kv_loads, qk=qk, pv=pv, S=S, O=O, t0=t0, t1=t1, t2=t2, aKm=aKm, aKt=aKt, aV=aV,
                    skh=skh, sKO=sKO, sVO=sVO, mreg=(Km[1][0], Km[1][0]+1))
    srb, scb = sh, sqb
    sK1, sK2, sR1, sR2 = 50, 51, 52, 53
    sA, sMK = 54, 56
    keep = {lane, vz, aXH, aEF}
    V = Alloc(24, 256)
    assert max(keep) < 24
    tok = V(); g = V(); t0 = V(); t1 = V(); t2 = V(); t3 = V()
    aO = V(); aT = V(); aA = V(2); aAt = V(2); aE = V(); key = V(); mean = V(); rstd = V(); rr = V(); aPR = V()
    xr = V(10, 2); wf = V(20, 2)
    acc = V(20, 4)
    st = V(12, 4)
    lp_ = V(10, 2); hp = V(10, 2)
    B = V(80, 4)
    A(f"""v_and_b32 v{tok}, 15, v{lane}
          v_lshrrev_b32 v{g}, 4, v{lane}
          v_bfe_u32 v{t0}, v{lane}, 2, 2
          v_and_b32 v{t2}, 3, v{lane}
          v_mul_u32_u24 v{t2}, 40, v{t2}
          v_mul_u32_u24 v{t3}, 160, v{t0}
          v_add_u32 v{t2}, v{t2}, v{t3}
          v_lshrrev_b32 v{t0}, 1, v{g}
          v_mul_u32_u24 v{t3}, {20*160}, v{t0}
          v_add_u32 v{t3}, v{t2}, v{t3}
          v_and_b32 v{t1}, 1, v{g}
          v_mul_u32_u24 v{aA}, {12*160}, v{t1}
          v_add_u32 v{aA}, v{aA}, v{t3}
          v_mul_u32_u24 v{aA+1}, {4*160}, v{t1}
          v_add_u32 v{aA+1}, v{aA+1}, v{t3}
          v_add_u32 v{aA+1}, {4*160}, v{aA+1}""")
    def fread(i):
        s_, ct = divmod(i, 5); slot = 4*(i % RING); L = []
        for t in range(2):
            if s_ < 16:
                L.append(f"ds_read_b64_tr_b16 {a(slot+2*t,2)}, v{aA+t} offset:{(s_ & 7)*40*160 + 8*ct}")
            else:
                q = s_ - 16
                L.append(f"ds_read_b64_tr_b16 {a(slot+2*t,2)}, v{aAt+(q>>1)} offset:{((q&1)*160 + 40*t)*160 + 8*ct}")
        return L
    for i in range(RING):
        if i == 40:
            A(f"v_add_u32 v{aA}, {320*160}, v{aA}\nv_add_u32 v{aA+1}, {320*160}, v{aA+1}")
        for x in fread(i): A(x)
    A(f"""v_lshl_add_u32 v{t1}, v{t0}, 2, v{t1}
          v_mul_u32_u24 v{aAt}, {20*160}, v{t1}
          v_add_u32 v{aAt}, v{aAt}, v{t2}
          v_add_u32 v{aAt}, {16*160}, v{aAt}
          v_add_u32 v{aAt+1}, {320*160}, v{aAt}
          s_lshl_b32 s{sT0}, s{srb}, 6
          s_lshl_b32 s{sT2}, s{sw}, 4
          s_add_u32 s{sT0}, s{sT0}, s{sT2}
          v_add_u32 v{t0}, s{sT0}, v{tok}
          v_sub_u32 v{key}, 2047, v{t0}
          v_lshlrev_b32 v{t2}, 14, v{t1}
          v_lshl_add_u32 v{aT}, v{t0}, 3, v{t2}
          v_add_u32 v{aT}, {WS_OT}, v{aT}
          v_lshlrev_b32 v{t1}, 15, v{g}
          v_lshl_add_u32 v{aO}, v{t0}, 4, v{t1}
          v_add_u32 v{aO}, {WS_OM}, v{aO}""")
    A(f"""s_lshl_b32 s{sT0}, s{scb}, 2
          s_add_u32 s{sT0}, s{sT0}, s{sw}
          s_sub_u32 s{sT1}, s{sT0}, 20
          s_cselect_b32 s{sT0}, s{sT0}, s{sT1}
          s_lshr_b32 s{sT1}, s{sT0}, 3
          s_lshl_b32 s{sT1}, s{sT1}, 15
          s_and_b32 s{sT2}, s{sT0}, 7
          s_lshl_b32 s{sT2}, s{sT2}, 7
          s_add_u32 s{sT1}, s{sT1}, s{sT2}
          s_lshl_b32 s{sK1}, s{srb}, 10
          s_add_u32 s{sT1}, s{sT1}, s{sK1}
          s_add_u32 s{sT1}, s{sT1}, {WS_OM}
          s_lshl_b32 s{sK1}, s{srb}, 9
          s_add_u32 s{sT2}, s{sT2}, s{sK1}
          s_add_u32 s{sT2}, s{sT2}, {WS_OT}
          s_cmp_lt_u32 s{sT0}, 16
          s_cselect_b32 s{sT1}, s{sT1}, s{sT2}
          s_cselect_b32 s{sT2}, 16, 14
          v_and_b32 v{t0}, 31, v{lane}
          v_lshlrev_b32 v{t0}, s{sT2}, v{t0}
          v_add_u32 v{aPR}, s{sT1}, v{t0}""")
    for r in range(10):
        A(f"v_accvgpr_read_b32 v{xr+r}, a{A_X+r}\nv_accvgpr_read_b32 v{t0}, a{A_WR+r}")
        unpack(A, wf+2*r, wf+2*r+1, t0)
    A(f"v_add_f32 v{st+3}, v{wf}, v{wf+1}")
    for r in range(2, 20): A(f"v_add_f32 v{st+3}, v{st+3}, v{wf+r}")
    for r in range(20): A(f"v_mov_b32 v{acc+r}, 0")
    spin(A, [f"buffer_load_dword v{t0}, v{aPR}, {W_}, 0 offen sc1"], lambda: sentinel_check(A, [t0], t3), "C_pr")
    stamp(A, 10)
    def oload(s_):
        if s_ < 16:
            return [f"s_mov_b32 s{sT0}, {s_*4*32768}", f"buffer_load_dwordx4 {v(B+4*s_,4)}, v{aO}, {W_}, s{sT0} offen sc1"]
        L = []
        for t in range(2):
            L += [f"s_mov_b32 s{sT0}, {(8*(s_-16)+2*t)*16384}", f"buffer_load_dwordx2 {v(B+4*s_+2*t,2)}, v{aT}, {W_}, s{sT0} offen sc1"]
        return L
    for s_ in range(20):
        for x in oload(s_): A(x)
    A(f"s_mov_b32 s{sCNT}, {SPIN}\ns_waitcnt lgkmcnt(0)")
    retry = []
    for i in range(100):
        s_, ct = divmod(i, 5)
        if ct == 0:
            left = 24 - (s_+1) if s_ < 16 else 24 - (16 + 2*(s_-15))
            A(f"s_waitcnt vmcnt({left})" + (" lgkmcnt(0)" if s_ == RING // 5 else ""))
            ck = A.uid("C_ck"); go = A.uid("C_go"); rt = A.uid("C_rt")
            A.label(ck)
            sentinel_check(A, range(B+4*s_, B+4*s_+4), t3)
            A(f"s_cbranch_vccnz {rt}")
            A.label(go)
            retry.append((rt, ck, go, s_))
        A(f"v_mfma_f32_16x16x32_bf16 {v(acc+4*ct,4)}, {a(4*(i % RING),4)}, {v(B+4*s_,4)}, {v(acc+4*ct,4)}")
        if 1 <= i <= 100 - RING:
            for x in fread(RING - 1 + i): A(x)
    stamp(A, 11)
    for j in range(9):
        for x in ef_read(j): A(x)
    for r in range(10):
        A(f"v_cvt_pk_bf16_f32 v{t0}, v{acc+2*r}, v{acc+2*r+1}")
        unpack(A, acc+2*r, acc+2*r+1, t0)
        unpack(A, t1, t2, xr+r)
        A(f"""v_add_f32 v{t1}, v{t1}, v{acc+2*r}
              v_add_f32 v{t2}, v{t2}, v{acc+2*r+1}
              v_cvt_pk_bf16_f32 v{hp+r}, v{t1}, v{t2}""")
        unpack(A, acc+2*r, acc+2*r+1, hp+r)
    A(f"v_add_f32 v{st}, v{acc}, v{acc+1}\nv_mul_f32 v{st+1}, v{acc}, v{acc}\nv_mul_f32 v{st+2}, v{acc}, v{wf}")
    for r in range(1, 20):
        if r >= 2: A(f"v_add_f32 v{st}, v{st}, v{acc+r}")
        A(f"v_fmac_f32 v{st+1}, v{acc+r}, v{acc+r}\nv_fmac_f32 v{st+2}, v{acc+r}, v{wf+r}")
    R4 = [st+q for q in range(4)]; T4 = [st+4+q for q in range(4)]
    allreduce_x(A, "v_add_f32", R4, T4, "16"); allreduce_x(A, "v_add_f32", R4, T4, "32")
    for q in range(4): A(f"v_min_u32 v{st+q}, -2, v{st+q}")
    A(f"""s_lshl_b32 s{sT0}, s{srb}, 13
          s_lshl_b32 s{sT1}, s{sw}, 8
          s_add_u32 s{sT0}, s{sT0}, s{sT1}
          s_add_u32 s{sT0}, s{sT0}, {WS_ST}
          s_lshl_b32 s{sT1}, s{scb}, 10
          s_add_u32 s{sT1}, s{sT1}, s{sT0}
          v_lshlrev_b32 v{t0}, 4, v{tok}
          v_lshl_add_u32 v{t1}, v{g}, 10, v{t0}
          v_add_u32 v{t2}, 4096, v{t1}
          s_mov_b64 exec, 0xffff
          buffer_store_dwordx4 {v(st,4)}, v{t0}, {W_}, s{sT1} offen sc1
          s_mov_b64 exec, -1""")
    stamp(A, 12)
    spin(A, [f"buffer_load_dwordx4 {v(st+4,4)}, v{t1}, {W_}, s{sT0} offen sc1",
             f"buffer_load_dwordx4 {v(st+8,4)}, v{t2}, {W_}, s{sT0} offen sc1"], lambda: sentinel_check(A, range(st+4, st+12), t3), "C_st")
    stamp(A, 13)
    L_KEY = L_EF + 12288 + 2048
    for q in range(4): A(f"v_add_f32 v{st+q}, v{st+4+q}, v{st+8+q}")
    allreduce_x(A, "v_add_f32", R4, T4, "16"); allreduce_x(A, "v_add_f32", R4, T4, "32")
    A(f"""v_mul_f32 v{mean}, {f32(1/640)}, v{st}
          v_mul_f32 v{t0}, v{mean}, v{mean}
          v_mov_b32 v{t1}, {f32(1/640)}
          v_fma_f32 v{t0}, v{st+1}, v{t1}, -v{t0}
          v_max_f32 v{t0}, 0, v{t0}
          v_add_f32 v{t0}, {f32(1e-5)}, v{t0}
          v_rsq_f32 v{rstd}, v{t0}
          v_fma_f32 v{t1}, -v{mean}, v{st+3}, v{st+2}
          v_mul_f32 v{t1}, v{t1}, v{rstd}
          v_ashrrev_i32 v{t2}, 31, v{t1}
          v_or_b32 v{t2}, 0x80000000, v{t2}
          v_xor_b32 v{t2}, v{t2}, v{t1}
          v_min_u32 v{t2}, 0xfffff7ff, v{t2}
          v_and_b32 v{t2}, 0xfffff800, v{t2}
          v_or_b32 v{key}, v{key}, v{t2}
          v_mov_b32 v{st+4}, v{key}""")
    allreduce16(A, "v_max_u32", [st+4])
    A(f"v_cmp_eq_u32 vcc, v{st+4}, v{key}\ns_lshl_b32 s{sT0}, s{sw}, 3\ns_add_u32 s{sT0}, s{sT0}, {L_KEY}\nv_cndmask_b32 v{st+5}, v{key}, 0, vcc")
    allreduce16(A, "v_max_u32", [st+5])
    A(f"""v_mov_b32 v{t0}, s{sT0}
          v_mov_b32 v{t1}, {L_KEY}
          ds_write_b64 v{t0}, {v(st+4,2)}
          s_waitcnt lgkmcnt(0)
          s_barrier
          ds_read_b128 {v(st+4,4)}, v{t1}
          ds_read_b128 {v(st+8,4)}, v{t1} offset:16""")
    for r in range(10):
        A(f"""v_sub_f32 v{t0}, v{acc+2*r}, v{mean}
              v_sub_f32 v{t1}, v{acc+2*r+1}, v{mean}
              v_mul_f32 v{t0}, v{t0}, v{rstd}
              v_mul_f32 v{t1}, v{t1}, v{rstd}
              v_cvt_pk_bf16_f32 v{lp_+r}, v{t0}, v{t1}""")
        if r == 3:
            A(f"s_waitcnt lgkmcnt(0)\nv_mov_b32 v{st}, v{st+4}\nv_mov_b32 v{st+1}, v{st+5}")
            for i in range(6, 12):
                A(f"v_med3_u32 v{st+1}, v{st}, v{st+1}, v{st+i}\nv_max_u32 v{st}, v{st}, v{st+i}")
            lk = A.uid("C_nock")
            A(f"""s_lshl_b32 s{sT0}, s{sw}, 3
                  s_add_u32 s{sT0}, s{sT0}, s{scb}
                  s_cmp_lg_u32 s{sT0}, 7
                  s_cbranch_scc1 {lk}
                  s_lshl_b32 s{sT0}, s{srb}, 7
                  s_add_u32 s{sT0}, s{sT0}, {WS_CK}
                  s_mov_b64 exec, 1
                  buffer_store_dwordx2 {v(st,2)}, v{vz}, {W_}, s{sT0} offen sc1
                  s_mov_b64 exec, -1""")
            A.label(lk)
    for r in range(10):
        A(f"v_min_u32 v{lp_+r}, -2, v{lp_+r}\nv_min_u32 v{hp+r}, -2, v{hp+r}")
    lc = A.uid("C_nocand")
    A(f"""v_cmp_eq_u32 vcc, v{st+1}, v{key}
          v_mul_u32_u24 v{t0}, 40, v{g}
          v_add_u32 v{t1}, {8*384}, v{t0}
          v_cndmask_b32 v{t0}, v{t0}, v{t1}, vcc
          v_cmp_le_u32 vcc, v{st+1}, v{key}
          s_mul_i32 s{sT0}, s{srb}, {16*384}
          s_mul_i32 s{sT1}, s{scb}, 384
          s_add_u32 s{sT0}, s{sT0}, s{sT1}
          s_add_u32 s{sT0}, s{sT0}, {WS_CR}
          s_and_saveexec_b64 s[{sA}:{sA+1}], vcc
          s_cbranch_execz {lc}
          buffer_store_dwordx4 {v(lp_,4)}, v{t0}, {W_}, s{sT0} offen sc1
          buffer_store_dwordx4 {v(lp_+4,4)}, v{t0}, {W_}, s{sT0} offen offset:16 sc1
          buffer_store_dwordx2 {v(lp_+8,2)}, v{t0}, {W_}, s{sT0} offen offset:32 sc1
          buffer_store_dwordx4 {v(hp,4)}, v{t0}, {W_}, s{sT0} offen offset:160 sc1
          buffer_store_dwordx4 {v(hp+4,4)}, v{t0}, {W_}, s{sT0} offen offset:176 sc1
          buffer_store_dwordx2 {v(hp+8,2)}, v{t0}, {W_}, s{sT0} offen offset:192 sc1""")
    A.label(lc)
    A("s_mov_b64 exec, -1")
    for r in range(10):
        unpack(A, t0, t1, lp_+r)
        A(f"""v_add_f32 v{t0}, v{t0}, v{acc+2*r}
              v_add_f32 v{t1}, v{t1}, v{acc+2*r+1}
              v_cvt_pk_bf16_f32 v{xr+r}, v{t0}, v{t1}""")
    A(f"""v_and_b32 v{t0}, 31, v{lane}
          v_lshlrev_b32 v{t0}, 7, v{t0}
          s_mov_b32 s{sT0}, {WS_CK}""")
    spin(A, [f"buffer_load_dwordx2 {v(st+4,2)}, v{t0}, {W_}, s{sT0} offen sc1"], lambda: sentinel_check(A, [st+4, st+5], t3), "C_ck")
    stamp(A, 14)
    A(f"v_mov_b32 v{st}, v{st+4}")
    allreduce16(A, "v_max_u32", [st]); allreduce_x(A, "v_max_u32", [st], [st+2], "16")
    A(f"v_cmp_eq_u32 vcc, v{st}, v{st+4}\nv_readfirstlane_b32 s{sK1}, v{st}\ns_nop 0\nv_cndmask_b32 v{st+1}, v{st+4}, v{st+5}, vcc")
    allreduce16(A, "v_max_u32", [st+1]); allreduce_x(A, "v_max_u32", [st+1], [st+2], "16")
    A(f"""s_nop 0
          v_readfirstlane_b32 s{sK2}, v{st+1}
          s_not_b32 s{sT0}, s{sK1}
          s_bfe_u32 s{sT0}, s{sT0}, 0x50006
          s_not_b32 s{sT1}, s{sK2}
          s_bfe_u32 s{sT1}, s{sT1}, 0x50006
          s_mul_i32 s{sR1}, s{sT0}, {16*384}
          s_mul_i32 s{sR2}, s{sT1}, {16*384}
          s_cmp_eq_u32 s{sT0}, s{sT1}
          s_cselect_b32 s{sT0}, {8*384}, 0
          s_add_u32 s{sR2}, s{sR2}, s{sT0}
          v_and_b32 v{t0}, 1, v{lane}
          v_cmp_eq_u32 vcc, 1, v{t0}
          v_mov_b32 v{t1}, s{sR1}
          v_mov_b32 v{t2}, s{sR2}
          v_cndmask_b32 v{aE}, v{t1}, v{t2}, vcc
          v_mov_b32 v{t1}, s{sK1}
          v_mov_b32 v{t2}, s{sK2}
          v_cndmask_b32 v{rr}, v{t1}, v{t2}, vcc
          v_cmp_gt_u32 s[{sA}:{sA+1}], s{sK2}, v{key}
          s_mov_b32 s{sMK}, 0x30003
          s_mov_b32 s{sMK+1}, 0x30003""")
    def out_store():
        lo = A.uid("C_noout")
        A(f"""s_mov_b64 exec, s[{sA}:{sA+1}]
              s_cbranch_execz {lo}
              buffer_store_dwordx4 {v(xr,4)}, v{aXH}, {R(sOUT)}, 0 offen
              buffer_store_dwordx4 {v(xr+4,4)}, v{aXH}, {R(sOUT)}, 0 offen offset:16
              buffer_store_dwordx2 {v(xr+8,2)}, v{aXH}, {R(sOUT)}, 0 offen offset:32""")
        A.label(lo)
        A("s_mov_b64 exec, -1")
    def reduce_put(nq):
        A(f"""v_lshlrev_b32 v{t0}, 4, v{lane}
              v_add_u32 v{t1}, s{sLE}, v{t0}
              v_add_u32 v{t0}, {L_EF}, v{t0}
              s_nop 4""")
        for q in range(nq):
            A(f"ds_write_b128 v{t1}, {v(st+4*q,4)} offset:{12288 + 1024*q}")
        A("s_waitcnt lgkmcnt(0)\ns_barrier")
    def reduce_get(red, nq):
        for q in range(nq):
            for w in range(4):
                A(f"ds_read_b128 {v(red+16*q+4*w,4)}, v{t0} offset:{L_WAVE*w + 12288 + 1024*q}")
        A("s_waitcnt lgkmcnt(0)")
        for q in range(nq):
            for i in range(0, 4, 2):
                b = red + 16*q + i
                A(f"""v_pk_add_f32 {v(b,2)}, {v(b,2)}, {v(b+4,2)}
                      v_pk_add_f32 {v(b+8,2)}, {v(b+8,2)}, {v(b+12,2)}
                      v_pk_add_f32 {v(b,2)}, {v(b,2)}, {v(b+8,2)}""")
    lnE = A.uid("C_notE"); lend = A.uid("C_end"); lout = A.uid("C_outonly")
    A(f"s_cmp_lg_u32 s{sROLE}, 0\ns_cbranch_scc1 {lnE}")
    red = B + 32
    A(f"""v_lshrrev_b32 v{t0}, 1, v{g}
          v_and_b32 v{t1}, 1, v{g}
          v_mul_u32_u24 v{t2}, 384, v{t0}
          v_lshl_add_u32 v{t2}, v{t1}, 4, v{t2}
          v_add_u32 v{aE}, v{aE}, v{t2}
          s_mul_i32 s{sT0}, s{sw}, 768
          s_add_u32 s{sT0}, s{sT0}, {WS_CR}
          s_mov_b64 exec, s[{sMK}:{sMK+1}]""")
    spin(A, [f"buffer_load_dwordx4 {v(B+4*s_,4)}, v{aE}, {W_}, s{sT0} offen offset:{32*s_} sc1" for s_ in range(5)],
         lambda: sentinel_check(A, range(B, B+20), t3), "E_cr")
    stamp(A, 15)
    A("s_mov_b64 exec, -1")
    for s_ in range(5):
        for m in range(2):
            A(f"v_mfma_f32_16x16x32_bf16 {v(st+4*m,4)}, {a(A_EF+4*(2*s_+m),4)}, {v(B+4*s_,4)}, {'0' if s_ == 0 else v(st+4*m,4)}")
    reduce_put(2)
    A(f"s_cmp_lg_u32 s{sw}, 0\ns_cbranch_scc1 {lout}")
    reduce_get(red, 2)
    ga, up, ex = red, red + 16, red + 4
    for b in (ga, up):
        for i in range(2):
            A(f"v_cvt_pk_bf16_f32 v{t0}, v{b+2*i}, v{b+2*i+1}")
            unpack(A, b+2*i, b+2*i+1, t0)
    for i in range(4): A(f"v_mul_f32 v{ex+i}, {f32(-math.log2(math.e))}, v{ga+i}")
    for i in range(4): A(f"v_exp_f32 v{ex+i}, v{ex+i}")
    for i in range(4): A(f"v_add_f32 v{ex+i}, 1.0, v{ex+i}")
    for i in range(4): A(f"v_rcp_f32 v{ex+i}, v{ex+i}")
    for i in range(4): A(f"v_mul_f32 v{ga+i}, v{ga+i}, v{ex+i}")
    for i in range(2):
        A(f"v_cvt_pk_bf16_f32 v{t0}, v{ga+2*i}, v{ga+2*i+1}")
        unpack(A, ga+2*i, ga+2*i+1, t0)
        A(f"""v_mul_f32 v{ga+2*i}, v{ga+2*i}, v{up+2*i}
              v_mul_f32 v{ga+2*i+1}, v{ga+2*i+1}, v{up+2*i+1}
              v_cvt_pk_bf16_f32 v{st+i}, v{ga+2*i}, v{ga+2*i+1}
              v_min_u32 v{st+i}, -2, v{st+i}""")
    A(f"""v_and_b32 v{t0}, 1, v{lane}
          v_lshlrev_b32 v{t0}, 5, v{t0}
          v_lshl_add_u32 v{t0}, v{g}, 3, v{t0}
          s_lshl_b32 s{sT0}, s{sIDX}, 7
          s_add_u32 s{sT0}, s{sT0}, {WS_AC}
          s_mov_b64 exec, s[{sMK}:{sMK+1}]
          buffer_store_dwordx2 {v(st,2)}, v{t0}, {W_}, s{sT0} offen sc1""")
    stamp(A, 16)
    A.label(lout)
    out_store()
    A(f"s_branch {lend}")
    A.label(lnE)
    out_store()
    A(f"s_cmp_lg_u32 s{sROLE}, 1\ns_cbranch_scc1 {lend}")
    red = B + 48
    ll = lp_; hh = lp_ + 2; sig = mean; aR = rstd
    A(f"""s_mul_i32 s{sT0}, s{sIDX}, 52429
          s_lshr_b32 s{sT0}, s{sT0}, 18
          s_mul_i32 s{sT0}, s{sT0}, {384 - 160}
          s_lshl_b32 s{sT1}, s{sIDX}, 5
          s_add_u32 s{sT0}, s{sT0}, s{sT1}
          s_add_u32 s{sT0}, s{sT0}, {WS_CR}
          v_lshl_add_u32 v{aE}, v{g}, 3, v{aE}
          v_not_b32 v{t2}, v{rr}
          v_and_b32 v{t1}, 2047, v{t2}
          v_mul_u32_u24 v{aR}, 1280, v{t1}
          v_lshl_add_u32 v{aR}, v{g}, 3, v{aR}
          v_add_u32 v{aR}, s{sT1}, v{aR}
          v_ashrrev_i32 v{t2}, 31, v{t2}
          v_or_b32 v{t2}, 0x80000000, v{t2}
          v_xor_b32 v{t1}, v{t2}, v{rr}
          v_mul_f32 v{t1}, {f32(-math.log2(math.e))}, v{t1}
          v_exp_f32 v{t1}, v{t1}
          v_and_b32 v{t0}, 1, v{lane}
          v_add_f32 v{t1}, 1.0, v{t1}
          v_rcp_f32 v{sig}, v{t1}
          v_lshlrev_b32 v{t0}, 5, v{t0}
          v_lshrrev_b32 v{t1}, 1, v{g}
          v_lshl_add_u32 v{t0}, v{t1}, 7, v{t0}
          v_and_b32 v{t1}, 1, v{g}
          v_lshl_add_u32 v{t0}, v{t1}, 4, v{t0}
          s_mov_b64 exec, s[{sMK}:{sMK+1}]""")
    spin(A, [f"buffer_load_dwordx2 {v(ll,2)}, v{aE}, {W_}, s{sT0} offen sc1",
             f"buffer_load_dwordx2 {v(hh,2)}, v{aE}, {W_}, s{sT0} offen offset:160 sc1"], lambda: sentinel_check(A, range(ll, ll+4), t3), "F_cr")
    stamp(A, 15)
    A(f"""s_mul_i32 s{sT0}, s{sw}, {24*128}
          s_add_u32 s{sT0}, s{sT0}, {WS_AC}""")
    spin(A, [f"buffer_load_dwordx4 {v(B+4*s_,4)}, v{t0}, {W_}, s{sT0} offen offset:{256*s_} sc1" for s_ in range(12)],
         lambda: sentinel_check(A, range(B, B+48), t3), "F_ac")
    stamp(A, 16)
    A("s_mov_b64 exec, -1")
    for s_ in range(12):
        A(f"v_mfma_f32_16x16x32_bf16 {v(st,4)}, {a(A_EF+4*s_,4)}, {v(B+4*s_,4)}, {'0' if s_ == 0 else v(st,4)}")
    reduce_put(1)
    A(f"s_cmp_lg_u32 s{sw}, 0\ns_cbranch_scc1 {lend}")
    reduce_get(red, 1)
    for i in range(2):
        unpack(A, t0, t1, ll+i)
        A(f"""v_fmac_f32 v{t0}, v{red+2*i}, v{sig}
              v_fmac_f32 v{t1}, v{red+2*i+1}, v{sig}
              v_cvt_pk_bf16_f32 v{t2}, v{t0}, v{t1}""")
        unpack(A, t0, t1, t2)
        unpack(A, red+4, red+5, hh+i)
        A(f"""v_add_f32 v{t0}, v{t0}, v{red+4}
              v_add_f32 v{t1}, v{t1}, v{red+5}
              v_cvt_pk_bf16_f32 v{st+i}, v{t0}, v{t1}""")
    A(f"""s_mov_b64 exec, s[{sMK}:{sMK+1}]
          buffer_store_dwordx2 {v(st,2)}, v{aR}, {R(sOUT)}, 0 offen""")
    A.label(lend)
    if OPT["probe"] is not None:
        probe_end(A, done)
    else:
        prof_end(A, sWS, sw, t0)
    A.label(done)
    A("s_endpgm")
    for rt, ck, go, s_ in retry:
        A.label(rt)
        A(f"s_cmp_eq_u32 s{sCNT}, 0\ns_cbranch_scc1 {go}\ns_sub_u32 s{sCNT}, s{sCNT}, 1")
        for x in oload(s_): A(x)
        A(f"s_waitcnt vmcnt(0)\ns_branch {ck}")
    slow_path(A, **slow_ctx)
    return dict(label=label, grid=256, block=256, lds=LDS_TOTAL, vgpr=512, acc=256,
                lint_entries=[None, label+"_V", label+"_S", lF, lnE, slow])

def slow_path(A, slow, norm, rowsum, kv_loads, qk, pv, S, O, t0, t1, t2, aKm, aKt, aV, skh, sKO, sVO, mreg):
    A.label(slow)
    A(f"""s_lshl_b32 s{sT0}, s{skh}, 14
          s_mul_i32 s{sT1}, s{skh}, {128*320}
          v_subrev_u32 v{aKm}, s{sT0}, v{aKm}
          v_subrev_u32 v{aKt}, s{sT0}, v{aKt}
          v_subrev_u32 v{aV}, s{sT1}, v{aV}
          s_mov_b32 s{sKO}, 0
          s_mov_b32 s{sVO}, 0
          v_mov_b32 v{mreg[0]}, 0xff7fffff
          v_mov_b32 v{mreg[1]}, 0xff7fffff""")
    for t in (2, 3):
        for r in range(16): A(f"v_mov_b32 v{O[t]+r}, 0")
    lp = A.uid("slow_loop")
    A.label(lp)
    for x in kv_loads(0, False): A(x)
    A("s_waitcnt vmcnt(0)")
    for kb in range(2):
        for t in (2, 3):
            m = mreg[t-2]; s_ = S[t]
            q = qk(0, kb, t)
            A(q[0]); A(q[1]); A("s_nop 11")
            A(f"v_max3_f32 v{t0}, v{s_}, v{s_+1}, v{m}")
            for r in range(2, 16, 2): A(f"v_max3_f32 v{t0}, v{s_+r}, v{s_+r+1}, v{t0}")
            allreduce_x(A, "v_max_f32", [t0], [t1], "32")
            A(f"v_sub_f32 v{t1}, v{m}, v{t0}\nv_exp_f32 v{t1}, v{t1}\nv_mov_b32 v{m}, v{t0}")
            for r in range(16): A(f"v_sub_f32 v{s_+r}, v{s_+r}, v{t0}")
            for r in range(16): A(f"v_exp_f32 v{s_+r}, v{s_+r}")
            for r in range(16): A(f"v_mul_f32 v{O[t]+r}, v{O[t]+r}, v{t1}")
            A("s_nop 1")
            p = pv(0, kb, t)
            A(p[0]); A(p[1])
    A(f"""s_add_u32 s{sKO}, s{sKO}, 1024
          s_add_u32 s{sVO}, s{sVO}, 2560
          s_cmp_lt_u32 s{sKO}, 32768
          s_cbranch_scc1 {lp}
          s_nop 11""")
    rowsum()
    A(f"s_branch {norm}")

def probe_end(A, done):
    i = OPT["probe"]
    lp = A.uid("probe")
    A(f"""s_waitcnt vmcnt(0)
          s_memrealtime s[{S_ST+2*(NST-1)}:{S_ST+2*(NST-1)+1}]
          s_lshl_b32 s3, s2, 2
          s_add_u32 s3, s3, s{sw}
          s_cmp_lg_u32 s3, {OPT['probe_wg']*4 + OPT['probe_wave']}
          s_cbranch_scc1 {done}
          s_waitcnt lgkmcnt(0)
          s_sub_u32 s3, s{S_ST+2*i}, s{S_ST}
          s_min_u32 s3, s3, 10000
          s_lshl_b32 s3, s3, 2
          s_add_u32 s3, s3, 6000
          s_add_u32 s3, s3, s{S_ST}""")
    A.label(lp)
    A(f"""s_memrealtime s[44:45]
          s_waitcnt lgkmcnt(0)
          s_sub_u32 s46, s3, s44
          s_cmp_gt_i32 s46, 0
          s_cbranch_scc1 {lp}""")
```
